```python
import torch

def _softmax(x, axis=-1):
    return torch.softmax(x, dim=axis)

def _gelu(x):
    return torch.nn.functional.gelu(x, approximate='tanh')

def _silu(x):
    return torch.nn.functional.silu(x)

def _sigmoid(x):
    return torch.sigmoid(x)

def _layernorm(x, axis=-1, eps=1e-05):
    m = x.mean(dim=axis, keepdim=True)
    v = x.var(dim=axis, keepdim=True, unbiased=False)
    return (x - m) / torch.sqrt(v + eps)

def _scatter_add(tgt, idx, src, axis=0):
    return tgt.clone().index_add_(axis, idx, src)

def _segment_sum(src, seg, n):
    out = torch.zeros((n,) + src.shape[1:], dtype=src.dtype)
    return out.index_add_(0, seg, src)

def _pad(x, pw):
    flat = tuple((v for pair in reversed(pw) for v in pair))
    return torch.nn.functional.pad(x, flat)
kernel_name = 'parallel_sum__softmax_full_mha__mixer_gmlp__prompt'

def setup_inputs():

    _w = lambda a: (lambda t: t.to(torch.bfloat16) if t.is_floating_point() else t)(torch.as_tensor(a))

    def _A_setup():
        B, S, D = (1, 2048, 512)
        return {'x': _w((lambda *s: torch.randn(*s, dtype=torch.bfloat16) * 0.05)(B, S, D)), 'wqkv': _w((lambda *s: torch.randn(*s, dtype=torch.bfloat16) * 0.2)(D, 3 * D)), 'wo': _w((lambda *s: torch.randn(*s, dtype=torch.bfloat16) * 0.2)(D, D))}
    _A_in = _A_setup()

    def _B_setup():
        B, S, D, F = (1, 2048, 512, 1792)
        Fh = F // 2
        return {'x': _w((lambda *s: torch.randn(*s, dtype=torch.bfloat16) * 0.05)(B, S, D)), 'w_in': _w((lambda *s: torch.randn(*s, dtype=torch.bfloat16) * 0.8)(D, 2 * Fh)), 'w_sp': _w(0.01 * (lambda *s: torch.randn(*s, dtype=torch.bfloat16) * 0.8)(S, S)), 'b_sp': _w(1.0 + 0.01 * (lambda *s: torch.randn(*s, dtype=torch.bfloat16) * 0.2)(S)), 'w_out': _w((lambda *s: torch.randn(*s, dtype=torch.bfloat16) * 0.2)(Fh, D))}
    _B_in = _B_setup()
    return {'A_x': _A_in['x'], 'A_wqkv': _A_in['wqkv'], 'A_wo': _A_in['wo'], 'B_x': _B_in['x'], 'B_w_in': _B_in['w_in'], 'B_w_sp': _B_in['w_sp'], 'B_b_sp': _B_in['b_sp'], 'B_w_out': _B_in['w_out']}

def reference(A_x, A_wqkv, A_wo, B_x, B_w_in, B_w_sp, B_b_sp, B_w_out):

    def _A_ref(x, wqkv, wo):
        B, S, D = x.shape
        H = 32
        Dh = D // H
        qkv = (lambda x, *d: x.permute(*d))((x @ wqkv).reshape(B, S, 3, H, Dh), 2, 0, 3, 1, 4)
        q, k, v = (qkv[0], qkv[1], qkv[2])
        scale = Dh ** (-0.5)
        scores = torch.einsum('bhqd,bhkd->bhqk', q, k) * scale
        p = _softmax(scores, axis=-1)
        o = torch.einsum('bhqk,bhkd->bhqd', p, v)
        return (lambda x, *d: x.permute(*d))(o, 0, 2, 1, 3).reshape(B, S, D) @ wo

    def _B_ref(x, w_in, w_sp, b_sp, w_out):
        B, S, D = x.shape
        F = w_in.shape[-1]
        Fh = F // 2
        z = _gelu(torch.einsum('bsd,df->bsf', x, w_in))
        z1 = z[..., :Fh].clone()
        z2 = _layernorm(z[..., Fh:], axis=-1)
        g = torch.einsum('ts,bsf->btf', w_sp, z2) + b_sp[None, :, None]
        return torch.einsum('bsf,fd->bsd', z1 * g, w_out)
    x = A_x
    xn = _layernorm(x, axis=-1)
    return x + _A_ref(xn, A_wqkv, A_wo) + _B_ref(xn, B_w_in, B_w_sp, B_b_sp, B_w_out)
```

```python
import re

TRANS = ("v_exp_f32", "v_log_f32", "v_rcp_f32", "v_rsq_f32", "v_sqrt_f32", "v_sin_f32", "v_cos_f32",
         "v_exp_f16", "v_rcp_f16", "v_rcp_iflag_f32")

_reg_re = re.compile(r"^(-?)(?:abs\()?([vas])(\d+)\)?$")
_rng_re = re.compile(r"^(-?)(?:abs\()?([vas])\[(\d+):(\d+)\]\)?$")


def regs_of(op):
    op = op.strip()
    m = _reg_re.match(op)
    if m:
        return [(m.group(2), int(m.group(3)))]
    m = _rng_re.match(op)
    if m:
        return [(m.group(2), i) for i in range(int(m.group(3)), int(m.group(4)) + 1)]
    if op == "vcc":
        return [("s", 106), ("s", 107)]
    if op in ("vcc_lo",):
        return [("s", 106)]
    if op in ("vcc_hi",):
        return [("s", 107)]
    if op == "m0":
        return [("m", 0)]
    if op == "exec":
        return [("e", 0)]
    return []


def split_ops(s):
    out, depth, cur = [], 0, ""
    for ch in s:
        if ch in "[(":
            depth += 1
        if ch in "])":
            depth -= 1
        if ch == "," and depth == 0:
            out.append(cur.strip()); cur = ""
        else:
            cur += ch
    if cur.strip():
        out.append(cur.strip())
    return out


class Ins:
    __slots__ = ("text", "mn", "kind", "rd", "wr", "ws", "passes", "srcc", "srcab", "dst", "wide", "dpp", "label")

    def __init__(self, text):
        self.text = text
        t = text.split(";")[0].strip()
        self.label = t.endswith(":")
        self.rd, self.wr = [], []
        self.kind = "other"
        self.ws = 1
        self.passes = 0
        self.srcc = []
        self.srcab = []
        self.dst = []
        self.wide = False
        self.dpp = False
        if self.label or not t or t.startswith("."):
            self.mn = ""
            self.ws = 0
            self.kind = "label" if self.label else "dir"
            return
        parts = t.split(None, 1)
        mn = parts[0]
        for suf in ("_e32", "_e64", "_dpp", "_sdwa"):
            if mn.endswith(suf):
                if suf == "_dpp":
                    self.dpp = True
                mn = mn[: -len(suf)]
        self.mn = mn
        rest = parts[1] if len(parts) > 1 else ""
        ops = split_ops(rest)
        mods = ""
        if ops:
            sp = ops[-1].split(None, 1)
            if len(sp) > 1 and not ops[-1].startswith("abs("):
                ops[-1] = sp[0]; mods = sp[1]
        if "row_" in mods or "quad_perm" in mods or "wave_" in mods:
            self.dpp = True
        R = [regs_of(o) for o in ops]
        if mn == "s_nop":
            self.ws = int(ops[0], 0) + 1
            self.kind = "salu"
        elif mn.startswith("v_mfma"):
            self.kind = "mfma"
            self.passes = 8 if "32x32x16" in mn or "32x32x8" in mn else 4
            self.dst = R[0]; self.srcab = R[1] + R[2]; self.srcc = R[3]
            self.wr = R[0]; self.rd = R[1] + R[2] + R[3]
        elif mn.startswith("v_"):
            self.kind = "trans" if mn in TRANS else "valu"
            if mn.startswith("v_permlane") and "swap" in mn:
                self.wr = R[0] + R[1]; self.rd = R[0] + R[1]
            elif mn.startswith("v_cmp"):
                self.wr = R[0]; self.rd = sum(R[1:], [])
            elif mn in ("v_add_co_u32", "v_sub_co_u32", "v_addc_co_u32", "v_subb_co_u32", "v_mad_u64_u32"):
                self.wr = R[0] + R[1]; self.rd = sum(R[2:], [])
            else:
                self.wr = R[0]; self.rd = sum(R[1:], [])
                if mn in ("v_fmac_f32", "v_dot2c_f32_bf16", "v_pk_fmac_f16", "v_writelane_b32") or self.dpp:
                    self.rd += R[0]
                if mn == "v_cndmask_b32" and len(ops) == 3:
                    self.rd += regs_of("vcc")
        elif mn.startswith("ds_read") or mn.startswith("ds_bpermute") or mn.startswith("ds_swizzle") or mn.startswith("ds_permute"):
            self.kind = "lds"
            self.wr = R[0]; self.rd = sum(R[1:], [])
        elif mn.startswith("ds_"):
            self.kind = "lds"
            self.rd = sum(R, [])
        elif mn.startswith("buffer_load") or mn.startswith("global_load"):
            self.kind = "vmem"
            if " lds" in (" " + mods) or "_lds_" in mn:
                self.rd = sum(R, []) + [("m", 0)]
                self.kind = "vmem_lds"
            else:
                self.wr = R[0]; self.rd = sum(R[1:], [])
        elif mn.startswith("buffer_store") or mn.startswith("global_store"):
            self.kind = "vmem"
            self.rd = sum(R, [])
            self.wide = mn.endswith("x4") or mn.endswith("x3")
            self.dst = R[0] if mn.startswith("buffer") else R[1]
        elif mn.startswith("buffer_atomic") or mn.startswith("global_atomic"):
            self.kind = "vmem"
            self.rd = sum(R, [])
            if "sc0" in mods:
                self.wr = R[0]
        elif mn.startswith("buffer_"):
            self.kind = "vmem"
        elif mn.startswith("s_"):
            self.kind = "salu"
            if mn.startswith("s_cmp") or mn.startswith("s_cbranch") or mn in ("s_branch", "s_barrier", "s_waitcnt", "s_endpgm", "s_setprio", "s_sleep"):
                self.rd = sum(R, [])
            elif R:
                self.wr = R[0]; self.rd = sum(R[1:], [])
                if "saveexec" in mn:
                    self.wr += [("e", 0)]


class HazState:
    def __init__(self):
        self.t = 0
        self.valu_w = {}
        self.trans_w = {}
        self.mfma_w = {}
        self.mfma_c = {}
        self.m0_w = -100
        self.wide_st = {}

    def copy(self):
        h = HazState()
        h.t = self.t
        for k in ("valu_w", "trans_w", "mfma_w", "mfma_c", "wide_st"):
            setattr(h, k, dict(getattr(self, k)))
        h.m0_w = self.m0_w
        return h

    def need(self, ins):
        t = self.t
        n = 0
        def req(t0, ws):
            nonlocal n
            gap = t - t0
            if ws - gap > n:
                n = ws - gap
        k = ins.kind
        vec = k in ("valu", "trans")
        if k == "mfma":
            for r in ins.rd:
                if r in self.valu_w and r[0] in "va":
                    req(self.valu_w[r], 2)
            for r in ins.srcab:
                if r in self.mfma_w:
                    t0, p, _ = self.mfma_w[r]; req(t0, 12 if p == 8 else 8)
            for r in ins.srcc:
                if r in self.mfma_w:
                    t0, p, d = self.mfma_w[r]
                    if tuple(d) == tuple(ins.srcc) and p == ins.passes:
                        pass
                    else:
                        req(t0, 10 if p == 8 else 6)
            for r in ins.dst:
                if r in self.mfma_w and r not in ins.srcc:
                    t0, p, d = self.mfma_w[r]; req(t0, 10 if p == 8 else 6)
        elif k in ("valu", "trans", "lds", "vmem", "vmem_lds"):
            for r in ins.rd + ins.wr:
                if r in self.mfma_w:
                    t0, p, _ = self.mfma_w[r]; req(t0, 12 if p == 8 else 8)
            if vec:
                for r in ins.wr:
                    if r in self.mfma_c:
                        t0, p = self.mfma_c[r]; req(t0, 7 if p == 8 else 3)
                    if r in self.wide_st:
                        req(self.wide_st[r], 2)
                if k == "valu":
                    for r in ins.rd:
                        if r in self.trans_w:
                            req(self.trans_w[r], 1)
                for r in ins.rd:
                    if r[0] == "s" and r in self.valu_w:
                        req(self.valu_w[r], 4 if ins.mn in ("v_readlane_b32", "v_writelane_b32") else 2)
                    if r[0] in "va" and r in self.valu_w:
                        if ins.mn in ("v_readlane_b32", "v_readfirstlane_b32"):
                            req(self.valu_w[r], 1)
                        if ins.mn.startswith("v_permlane") or ins.dpp:
                            req(self.valu_w[r], 2)
            else:
                for r in ins.wr:
                    if r in self.wide_st:
                        req(self.wide_st[r], 1)
                if k.startswith("vmem"):
                    for r in ins.rd:
                        if r[0] == "s" and r in self.valu_w:
                            req(self.valu_w[r], 5)
                for r in ins.rd:
                    if r in self.trans_w:
                        req(self.trans_w[r], 1)
            if k == "vmem_lds":
                req(self.m0_w, 1)
        elif k == "salu":
            for r in ins.rd:
                if r[0] == "s" and r in self.valu_w:
                    req(self.valu_w[r], 2)
        return n

    def step(self, ins):
        self.t += ins.ws
        t = self.t
        k = ins.kind
        if k in ("valu", "trans"):
            for r in ins.wr:
                self.valu_w[r] = t
                self.mfma_w.pop(r, None)
                if k == "trans":
                    self.trans_w[r] = t
                else:
                    self.trans_w.pop(r, None)
        elif k == "mfma":
            for r in ins.dst:
                self.mfma_w[r] = (t, ins.passes, ins.dst)
                self.valu_w.pop(r, None); self.trans_w.pop(r, None)
            for r in ins.srcc:
                self.mfma_c[r] = (t, ins.passes)
        else:
            for r in ins.wr:
                self.valu_w.pop(r, None); self.trans_w.pop(r, None)
                if r == ("m", 0):
                    self.m0_w = t
            if ins.wide:
                for r in ins.dst:
                    self.wide_st[r] = t


class Asm:
    def __init__(self):
        self.lines = []
        self.nlabel = 0

    def __call__(self, text):
        for ln in text.strip("\n").split("\n"):
            ln = ln.strip()
            if ln:
                self.lines.append(Ins(ln))

    def label(self, base="L"):
        self.nlabel += 1
        return f"{base}_{self.nlabel}"

    def render(self):
        lines = self.lines
        pad = [0] * len(lines)
        labels = {l.text.split(":")[0].strip(): i for i, l in enumerate(lines) if l.label}
        def scan(start, st, maxlen):
            changed = False
            t_end = st.t + maxlen if maxlen else None
            i = start
            while i < len(lines):
                ins = lines[i]
                if pad[i]:
                    st.t += pad[i]
                n = st.need(ins)
                if n > 0:
                    pad[i] += n; st.t += n; changed = True
                st.step(ins)
                if ins.mn.startswith("s_cbranch") or ins.mn == "s_branch":
                    tgt = ins.text.split(";")[0].split()[-1]
                    branches.append((labels[tgt], st.copy())) if maxlen == 0 else None
                    if maxlen and tgt in labels:
                        rem = t_end - st.t
                        if rem > 0:
                            changed |= scan(labels[tgt], st.copy(), rem)
                    if ins.mn == "s_branch":
                        if maxlen:
                            return changed
                        st = HazState()
                if ins.mn == "s_endpgm":
                    if maxlen:
                        return changed
                    st = HazState()
                if t_end is not None and st.t >= t_end:
                    return changed
                i += 1
            return changed
        for _ in range(10):
            branches = []
            ch = scan(0, HazState(), 0)
            for tgt, st in branches:
                ch |= scan(tgt, st, 24)
            if not ch:
                break
        out = []
        for i, ins in enumerate(lines):
            n = pad[i]
            while n > 0:
                k = min(n, 16)
                out.append(f"    s_nop {k-1}")
                n -= k
            if ins.label or ins.kind == "dir":
                out.append(ins.text)
            else:
                out.append("    " + ins.text)
        return "\n".join(out) + "\n"
```

```python
from asmb import Asm
from layout import *

class VM:
    def __init__(self, a):
        self.a = a
        self.q = []
    def issue(self, text, tag):
        self.a(text)
        self.q.append(tag)
    def note(self, tag):
        self.q.append(tag)
    def wait_text(self, tag):
        idx = max((i for i, t in enumerate(self.q) if t == tag), default=-1)
        if idx < 0:
            return None
        n = len(self.q) - 1 - idx
        self.q = self.q[idx + 1:]
        assert n <= 63
        return f"s_waitcnt vmcnt({n})"
    def wait(self, tag):
        t = self.wait_text(tag)
        if t:
            self.a(t)


def srd(a, d, lo, hi, nbytes, off=0):
    if off:
        a(f"s_add_u32 s{d}, s{lo}, {off}")
        a(f"s_addc_u32 s{d+1}, s{hi}, 0")
    else:
        a(f"s_mov_b32 s{d}, s{lo}")
        a(f"s_mov_b32 s{d+1}, s{hi}")
    a(f"s_mov_b32 s{d+2}, {nbytes}")
    a(f"s_mov_b32 s{d+3}, 0x00020000")


def interleave(a, mfmas, fillers, first=0):
    fl = list(fillers)
    def emit(f):
        if callable(f):
            f()
        else:
            a(f)
    for _ in range(min(first, len(fl))):
        emit(fl.pop(0))
    n = len(mfmas)
    tot = len(fl)
    done = 0
    for i, m in enumerate(mfmas):
        a(m)
        want = (tot * (i + 1) + n - 1) // n
        while done < want:
            emit(fl[done]); done += 1
    while done < tot:
        emit(fl[done]); done += 1


def frontload(a, mfmas, fillers, per=3):
    fl = list(fillers)
    def emit(f):
        if callable(f):
            f()
        else:
            a(f)
    for i, m in enumerate(mfmas):
        a(m)
        for _ in range(per):
            if fl:
                emit(fl.pop(0))
    for f in fl:
        emit(f)


def kernel_header(name):
    return f""".globl {name}
.p2align 8
.type {name},@function
{name}:
"""

def kernel_desc(name, vgpr, accum, sgpr=102):
    return f""".amdhsa_kernel {name}
  .amdhsa_next_free_vgpr {vgpr}
  .amdhsa_next_free_sgpr {sgpr}
  .amdhsa_accum_offset {accum}
  .amdhsa_group_segment_fixed_size 0
  .amdhsa_kernarg_size 88
  .amdhsa_user_sgpr_count 2
  .amdhsa_user_sgpr_kernarg_segment_ptr 1
  .amdhsa_system_sgpr_workgroup_id_x 1
.end_amdhsa_kernel
"""

def f32(x):
    import struct
    return "0x%08x" % struct.unpack("<I", struct.pack("<f", x))[0]

import os
STAMP = os.environ.get("STAMP", "0") == "1"

def stamp(a, i):
    if STAMP:
        a(f"s_memrealtime s[{70+2*i}:{71+2*i}]")
        if i == 1:
            a("s_memtime s[96:97]")

def stamp_flush(a, kidx, s_wg, srd_ws, s_wave, n, vbase=10):
    if not STAMP:
        return
    stamp(a, n)
    a("s_memtime s[98:99]")
    a(f"""
    s_getreg_b32 s68, hwreg(HW_REG_HW_ID)
    s_getreg_b32 s69, hwreg(HW_REG_XCC_ID)
    s_lshl_b32 s66, s{s_wg}, 2
    s_add_u32 s66, s66, s{s_wave}
    s_add_u32 s66, s66, {kidx*4096}
    s_lshl_b32 s66, s66, 6
    s_add_u32 s66, s66, {WS_STAMP}
    s_waitcnt lgkmcnt(0)
    s_nop 4
    v_mov_b32 v{vbase}, s68
    v_mov_b32 v{vbase+1}, s69
    """)
    for i in range(n + 1):
        a(f"v_mov_b32 v{vbase+2+i}, s{70+2*i}")
    for i in range(n + 1, 12):
        a(f"v_mov_b32 v{vbase+2+i}, 0")
    a(f"v_mov_b32 v{vbase+14}, s96")
    a(f"v_mov_b32 v{vbase+15}, s98")
    a(f"v_mov_b32 v{vbase+16}, 0")
    a("s_mov_b64 exec, 1")
    for k in range(4):
        a(f"buffer_store_dwordx4 v[{vbase+4*k}:{vbase+4*k+3}], v{vbase+16}, s[{srd_ws}:{srd_ws+3}], s66 offen offset:{16*k}")

def lstamp_issue(a):
    if STAMP:
        a("s_memrealtime s[64:65]")

def lstamp_save(a, vreg, s_idx):
    if STAMP:
        a(f"s_mov_b32 m0, s{s_idx}")
        a("s_nop 1")
        a(f"v_writelane_b32 v{vreg}, s64, m0")

def lstamp_flush(a, kidx, s_wg, srd_ws, s_wave, vreg, vtmp):
    if not STAMP:
        return
    a(f"""
    s_lshl_b32 s66, s{s_wg}, 2
    s_add_u32 s66, s66, s{s_wave}
    s_add_u32 s66, s66, {kidx*2048}
    s_lshl_b32 s66, s66, 8
    s_add_u32 s66, s66, {WS_LSTAMP}
    v_and_b32 v{vtmp}, 63, v0
    v_lshlrev_b32 v{vtmp}, 2, v{vtmp}
    buffer_store_dword v{vreg}, v{vtmp}, s[{srd_ws}:{srd_ws+3}], s66 offen
    """)
```

```python
import math
WS_Q = 0
WS_K = 2 << 20
WS_V = 4 << 20
WS_Z = 6 << 20
WS_Z2N = 14 << 20
WS_OH = 18 << 20
WS_END = 24 << 20
QC = 0.25 * math.log2(math.e)
WS_RS = 24 << 20
WS_CS = WS_RS + 16384
WS_END = 25 << 20
WS_STAMP = 25 << 20
WS_END = 26 << 20
WS_LSTAMP = 26 << 20
WS_END = 28 << 20
WS_CNT = WS_RS + 0x20000
```

```python
from asmb import Asm
from layout import *
import os, struct, math

STAMP = os.environ.get("STAMP", "0") == "1"

def srd(a, d, lo, hi, nbytes, off=0):
    if off:
        a(f"s_add_u32 s{d}, s{lo}, {off}")
        a(f"s_addc_u32 s{d+1}, s{hi}, 0")
    else:
        a(f"s_mov_b32 s{d}, s{lo}")
        a(f"s_mov_b32 s{d+1}, s{hi}")
    a(f"s_mov_b32 s{d+2}, {nbytes}")
    a(f"s_mov_b32 s{d+3}, 0x00020000")

def frontload(a, mfmas, fillers, per=3):
    fl = list(fillers)
    def emit(f):
        if callable(f):
            f()
        else:
            a(f)
    for i, m in enumerate(mfmas):
        a(m)
        for _ in range(per):
            if fl:
                emit(fl.pop(0))
    for f in fl:
        emit(f)

def kernel_header(name):
    return f""".globl {name}
.p2align 8
.type {name},@function
{name}:
"""

def kernel_desc(name, vgpr, accum, sgpr=102):
    return f""".amdhsa_kernel {name}
  .amdhsa_next_free_vgpr {vgpr}
  .amdhsa_next_free_sgpr {sgpr}
  .amdhsa_accum_offset {accum}
  .amdhsa_group_segment_fixed_size 0
  .amdhsa_kernarg_size 88
  .amdhsa_user_sgpr_count 2
  .amdhsa_user_sgpr_kernarg_segment_ptr 1
  .amdhsa_system_sgpr_workgroup_id_x 1
.end_amdhsa_kernel
"""

def f32(x):
    return "0x%08x" % struct.unpack("<I", struct.pack("<f", x))[0]

def bf16r(a, dst, src):
    a(f"v_cvt_pk_bf16_f32 v{dst}, v{src}, v{src}")
    a(f"v_lshlrev_b32 v{dst}, 16, v{dst}")

NSTAMP = 14
def stamp(a, i):
    if STAMP:
        assert i < NSTAMP
        a(f"s_memrealtime s[{70+2*i}:{71+2*i}]")

def stamp_init(a):
    if STAMP:
        for i in range(NSTAMP):
            a(f"s_mov_b32 s{70+2*i}, 0")

def stamp_flush(a, srd_ws, s_wave, vbase=100):
    if not STAMP:
        return
    stamp(a, NSTAMP - 1)
    a(f"""
    s_getreg_b32 s68, hwreg(HW_REG_HW_ID)
    s_getreg_b32 s69, hwreg(HW_REG_XCC_ID)
    s_lshl_b32 s66, s2, 3
    s_add_u32 s66, s66, s{s_wave}
    s_lshl_b32 s66, s66, 6
    s_add_u32 s66, s66, {WS_STAMP}
    s_waitcnt lgkmcnt(0)
    s_nop 4
    v_mov_b32 v{vbase}, s68
    v_mov_b32 v{vbase+1}, s69
    """)
    for i in range(NSTAMP):
        a(f"v_mov_b32 v{vbase+2+i}, s{70+2*i}")
    if os.environ.get("PROF"):
        a(f"v_mov_b32 v{vbase+2+10}, s64\nv_mov_b32 v{vbase+2+11}, s65\nv_mov_b32 v{vbase+2+12}, s10")
    a(f"v_mov_b32 v{vbase+16}, 0")
    a("s_mov_b64 exec, 1")
    for k in range(4):
        a(f"buffer_store_dwordx4 v[{vbase+4*k}:{vbase+4*k+3}], v{vbase+16}, s[{srd_ws}:{srd_ws+3}], s66 offen offset:{16*k}")
```

```python
from common import *

def lcm(x, y):
    return x * y // math.gcd(x, y)

V_LANE, V_AOFF, V_BOFF = 1, 2, 3
V_ROW, V_CHA, V_CHB = 2, 3, 4
LDS_MAX = 81920

def compute_lane_setup(a, t):
    L = V_LANE
    a(f"""
    v_and_b32 v{t}, 31, v{L}
    v_lshrrev_b32 v{t+1}, 5, v{L}
    v_bfe_u32 v{t+2}, v{t}, 1, 3
    v_xor_b32 v{t+2}, v{t+2}, v{t+1}
    v_lshlrev_b32 v{t+2}, 4, v{t+2}
    v_lshl_add_u32 v{V_AOFF}, v{t}, 7, v{t+2}
    v_bfe_u32 v{t+2}, v{L}, 2, 2
    v_lshl_add_u32 v{t+3}, v{t+1}, 3, v{t+2}
    v_lshlrev_b32 v{t+3}, 7, v{t+3}
    v_bfe_u32 v{t+4}, v{L}, 3, 1
    v_lshl_add_u32 v{t+3}, v{t+4}, 6, v{t+3}
    v_bfe_u32 v{t+4}, v{L}, 4, 1
    v_lshl_add_u32 v{t+3}, v{t+4}, 5, v{t+3}
    v_and_b32 v{t+4}, 1, v{L}
    v_lshl_add_u32 v{t+3}, v{t+4}, 4, v{t+3}
    v_bfe_u32 v{t+4}, v{L}, 1, 1
    v_lshl_add_u32 v{V_BOFF}, v{t+4}, 3, v{t+3}
    """)

def loader_lane_setup(a, t):
    L = V_LANE
    a(f"""
    v_lshrrev_b32 v{V_ROW}, 3, v{L}
    v_lshrrev_b32 v{t}, 4, v{L}
    v_and_b32 v{t+1}, 7, v{L}
    v_xor_b32 v{V_CHA}, v{t}, v{t+1}
    v_bfe_u32 v{t}, v{L}, 2, 1
    v_bfe_u32 v{t+1}, v{L}, 4, 1
    v_xor_b32 v{t}, v{t}, v{t+1}
    v_and_b32 v{t+1}, 3, v{L}
    v_lshl_add_u32 v{V_CHB}, v{t}, 2, v{t+1}
    """)

BIAS = 4096

class G2:
    def __init__(self, a, name, BM, NT, mt, nt, NA, NBB, ND, lds_a, lds_b, acc, fr, va, vb, s_wave, s_tmp, s_it, s_lw, s_ma, s_mb, G=2, st=None, s_one=None):
        self.__dict__.update(locals())
        self.AB = BM * 128
        self.BB = (NT // 2) * 4096
        self.qa = BM // 32
        self.qb = NT // 2
        self.FS = 4 * G * (mt + nt)
        self.period = lcm(2 * NA, NBB)
        assert lds_a + NA * self.AB <= LDS_MAX and lds_b + NBB * self.BB <= LDS_MAX

    def c_setup(self):
        a, st = self.a, self.s_tmp
        a(f"s_lshr_b32 s{st}, s{self.s_wave}, 1")
        if self.st:
            a(f"s_xor_b32 s{st+2}, s{st}, s{self.s_wave}")
            a(f"s_and_b32 s{st+2}, s{st+2}, 1")
            a(f"s_lshl_b32 s{st+3}, s{st+2}, 5")
            a(f"s_lshl_b32 s{st+2}, s{st+2}, 11")
            a(f"s_mov_b32 s{self.s_one}, 0x3f803f80")
        a(f"s_mul_i32 s{st}, s{st}, {self.mt*4096}")
        if self.lds_a:
            a(f"s_add_u32 s{st}, s{st}, {self.lds_a}")
        a(f"v_add_u32 v{self.va}, s{st}, v{V_AOFF}")
        if self.st:
            a(f"v_xor_b32 v{self.va}, s{st+3}, v{self.va}")
        for ks in range(1, 4):
            a(f"v_xor_b32 v{self.va+ks}, {ks*32}, v{self.va}")
        for j in range(self.nt):
            a(f"s_and_b32 s{st}, s{self.s_wave}, 1")
            a(f"s_mul_i32 s{st}, s{st}, {self.nt}")
            if j:
                a(f"s_add_u32 s{st}, s{st}, {j}")
            a(f"s_and_b32 s{st+1}, s{st}, 1")
            a(f"s_lshl_b32 s{st+1}, s{st+1}, 6")
            a(f"s_lshr_b32 s{st}, s{st}, 1")
            a(f"s_lshl_b32 s{st}, s{st}, 12")
            a(f"s_add_u32 s{st}, s{st}, {self.lds_b}")
            if self.st:
                a(f"s_add_u32 s{st}, s{st}, s{st+2}")
            a(f"v_xor_b32 v{self.vb+j}, s{st+1}, v{V_BOFF}")
            a(f"v_add_u32 v{self.vb+j}, s{st}, v{self.vb+j}")
            if self.st:
                a(f"v_xor_b32 v{self.st['vb1']+j}, 2048, v{self.vb+j}")
        if self.st:
            for r in self.st["rows"]:
                a(f"v_mov_b32 v{r}, 0")
                a(f"v_mov_b32 v{r+1}, 0")
            for r in self.st["cols"]:
                a(f"v_mov_b32 v{r}, 0")

    def dots(self, d, ksl):
        if not self.st:
            return []
        fa, fb = self._regs(d, ksl)
        use = lambda t: (ksl == (t & 1)) if self.G == 1 else ksl == 0
        lists = []
        for i in range(self.mt):
            if use(i):
                r = self.st["rows"][i]
                lists.append([f"v_dot2c_f32_bf16 v{r}, s{self.s_one}, v{fa+4*i+q}" for q in range(4)])
                lists.append([f"v_dot2c_f32_bf16 v{r+1}, v{fa+4*i+q}, v{fa+4*i+q}" for q in range(4)])
        for j in range(self.nt):
            if use(j):
                lists.append([f"v_dot2c_f32_bf16 v{self.st['cols'][j]}, s{self.s_one}, v{fb+4*j+q}" for q in range(4)])
        return [l[q] for q in range(4) for l in lists]

    def _regs(self, d, ksl):
        if self.G == 2:
            base = self.fr + (d & 1) * self.FS
            return base + ksl * self.mt * 4, base + 8 * self.mt + ksl * self.nt * 4
        base = self.fr + ksl * self.FS
        return base, base + 4 * self.mt

    def reads(self, d, ksl):
        sa, sb = (d >> 1) % self.NA, d % self.NBB
        fa, fb = self._regs(d, ksl)
        ra = [f"ds_read_b128 v[{fa+4*i}:{fa+4*i+3}], v{self.va + 2*(d&1) + ksl} offset:{sa*self.AB + i*4096}" for i in range(self.mt)]
        if self.st:
            vb = self.st["vb1"] if ksl else self.vb
            rb = [f"ds_read_b64_tr_b16 v[{fb+4*j+2*t}:{fb+4*j+2*t+1}], v{vb+j} offset:{sb*self.BB + 4*t*128}"
                  for j in range(self.nt) for t in range(2)]
        else:
            rb = [f"ds_read_b64_tr_b16 v[{fb+4*j+2*t}:{fb+4*j+2*t+1}], v{self.vb+j} offset:{sb*self.BB + (16*ksl+4*t)*128}"
                  for j in range(self.nt) for t in range(2)]
        return [ra[0]] + rb[:2] + ra[1:] + rb[2:]

    def mfmas(self, d, ksl):
        fa, fb = self._regs(d, ksl)
        out = []
        for j in range(self.nt):
            for i in range(self.mt):
                dd = self.acc + (j * self.mt + i) * 16
                out.append(f"v_mfma_f32_32x32x16_bf16 v[{dd}:{dd+15}], v[{fb+4*j}:{fb+4*j+3}], v[{fa+4*i}:{fa+4*i+3}], v[{dd}:{dd+15}]")
        return out

    def zero_acc(self):
        for r in range(self.acc, self.acc + self.mt * self.nt * 16):
            self.a(f"v_mov_b32 v{r}, 0")

    def _loop(self, n, step, tag):
        a, P = self.a, self.period
        if n <= 0:
            return
        if n <= P:
            for d in range(n):
                step(d)
            return
        iters = (n + P - 1) // P
        uex = (n - 1) % P
        a(f"s_mov_b32 s{self.s_it}, 0")
        a(f"{self.name}_{tag}_LOOP:")
        for u in range(P):
            step(u)
            if u == uex:
                a(f"s_add_u32 s{self.s_it}, s{self.s_it}, 1")
                a(f"s_cmp_lt_u32 s{self.s_it}, {iters}")
                if u == P - 1:
                    a(f"s_cbranch_scc1 {self.name}_{tag}_LOOP")
                else:
                    a(f"s_cbranch_scc0 {self.name}_{tag}_DONE")
        if uex != P - 1:
            a(f"s_branch {self.name}_{tag}_LOOP")
            a(f"{self.name}_{tag}_DONE:")

    def c_run(self, per=4, after_first=None):
        a = self.a
        a("s_barrier")
        if after_first:
            after_first()
        if self.G == 2:
            for r in self.reads(0, 0) + self.reads(0, 1):
                a(r)
            def step(d):
                a("s_waitcnt lgkmcnt(0)")
                a("s_barrier")
                frontload(a, self.mfmas(d, 0) + self.mfmas(d, 1), self.reads(d + 1, 0) + self.reads(d + 1, 1) + self.dots(d, 0), per)
        else:
            for r in self.reads(0, 0):
                a(r)
            def step(d):
                a("s_waitcnt lgkmcnt(0)")
                frontload(a, self.mfmas(d, 0), self.reads(d, 1) + self.dots(d, 0), per)
                a("s_waitcnt lgkmcnt(0)")
                a("s_barrier")
                frontload(a, self.mfmas(d, 1), self.reads(d + 1, 0) + self.dots(d, 1), per)
        self._loop(self.ND, step, "C")

    def l_setup_a(self, vda, lda, vt):
        a, st, qa = self.a, self.s_tmp, self.qa
        self.vda = vda
        rowb = lda if lda else 32
        a(f"s_mul_i32 s{st}, s{self.s_lw}, {8*qa*rowb}")
        a(f"s_mul_i32 s{self.s_ma}, s{self.s_lw}, {qa*1024}")
        if lda:
            a(f"s_mov_b32 s{st+1}, {lda}")
            a(f"v_lshlrev_b32 v{vt}, 4, v{V_CHA}")
            a(f"v_mad_u32_u24 v{vt}, v{V_ROW}, s{st+1}, v{vt}")
            a(f"v_add_u32 v{vt}, s{st}, v{vt}")
            a(f"v_xor_b32 v{vt+1}, 64, v{vt}")
            bias = 0
            self.ka_step = 128
        else:
            a(f"v_lshrrev_b32 v{vt}, 1, v{V_CHA}")
            a(f"v_lshlrev_b32 v{vt}, 16, v{vt}")
            a(f"v_lshl_add_u32 v{vt}, v{V_ROW}, 5, v{vt}")
            a(f"v_and_b32 v{vt+1}, 1, v{V_CHA}")
            a(f"v_lshl_add_u32 v{vt}, v{vt+1}, 4, v{vt}")
            a(f"v_add_u32 v{vt}, s{st}, v{vt}")
            a(f"v_xor_b32 v{vt+1}, {2*PL}, v{vt}")
            bias = BIAS
            self.ka_step = 4 * PL
        assert qa % 2 == 0
        for i in range(qa):
            a(f"v_add_u32 v{vda+i}, {bias + 8*i*rowb - i*1024}, v{vt + (i & 1)}")

    def l_setup_b(self, vdb, ldb, vt):
        a, st, qb = self.a, self.s_tmp, self.qb
        self.vdb = vdb
        a(f"s_mul_i32 s{self.s_mb}, s{self.s_lw}, {qb*1024}")
        if ldb:
            a(f"s_mov_b32 s{st+1}, {ldb}")
            a(f"v_lshlrev_b32 v{vt}, 4, v{V_CHB}")
            a(f"v_mad_u32_u24 v{vt}, v{V_ROW}, s{st+1}, v{vt}")
            eb, pb = 8 * ldb, 128
            self.kb_step = 32 * ldb
        else:
            a(f"v_lshrrev_b32 v{vt}, 1, v{V_CHB}")
            a(f"v_lshlrev_b32 v{vt}, 16, v{vt}")
            a(f"v_lshl_add_u32 v{vt}, v{V_ROW}, 5, v{vt}")
            a(f"v_and_b32 v{vt+1}, 1, v{V_CHB}")
            a(f"v_lshl_add_u32 v{vt}, v{vt+1}, 4, v{vt}")
            eb, pb = 8 * 32, 4 * PL
            self.kb_step = 32 * 32
        self.b_imm = not (ldb and qb == 3)
        for i in range(qb):
            a(f"s_mul_i32 s{st}, s{self.s_lw}, {qb}")
            if i:
                a(f"s_add_u32 s{st}, s{st}, {i}")
            a(f"s_and_b32 s{st+1}, s{st}, 3")
            a(f"s_mul_i32 s{st+1}, s{st+1}, {eb}")
            a(f"s_lshr_b32 s{st}, s{st}, 2")
            a(f"s_mul_i32 s{st}, s{st}, {pb}")
            a(f"s_add_u32 s{st}, s{st}, s{st+1}")
            adj = (0 if ldb else BIAS) - (i * 1024 if self.b_imm else 0)
            if adj:
                a(f"s_add_u32 s{st}, s{st}, {adj}")
            a(f"v_add_u32 v{vdb+i}, s{st}, v{vt}")

    def l_bind(self, srdA, srdB, s_ka, s_kb):
        self.srdA, self.srdB, self.s_ka, self.s_kb = srdA, srdB, s_ka, s_kb

    def issue_a(self, u):
        a = self.a
        a(f"s_add_u32 m0, s{self.s_ma}, {self.lds_a + (u % self.NA) * self.AB}")
        for i in range(self.qa):
            a(f"buffer_load_dwordx4 v{self.vda+i}, s[{self.srdA}:{self.srdA+3}], s{self.s_ka} offen offset:{i*1024} lds")
        a(f"s_add_u32 s{self.s_ka}, s{self.s_ka}, {self.ka_step}")

    def issue_b(self, d):
        a = self.a
        for i in range(self.qb):
            if i == 0 or not self.b_imm:
                a(f"s_add_u32 m0, s{self.s_mb}, {self.lds_b + (d % self.NBB) * self.BB + i*1024}")
            a(f"buffer_load_dwordx4 v{self.vdb+i}, s[{self.srdB}:{self.srdB+3}], s{self.s_kb} offen offset:{i*1024 if self.b_imm else 0} lds")
        a(f"s_add_u32 s{self.s_kb}, s{self.s_kb}, {self.kb_step}")

    def pro_order(self, which="ab"):
        out = []
        nau, nbu = min(self.NA, self.ND // 2), min(self.NBB, self.ND)
        for d in range(max(2 * nau, nbu)):
            if d % 2 == 0 and d // 2 < nau and "a" in which:
                out.append(("a", d // 2))
            if d < nbu and "b" in which:
                out.append(("b", d))
        return out

    def l_issue(self, lst):
        for k, i in lst:
            (self.issue_a if k == "a" else self.issue_b)(i)

    def l_run(self, order, work=None):
        a, ND = self.a, self.ND
        seq = []
        def add(k, i):
            seq.extend([(k, i)] * (self.qa if k == "a" else self.qb))
        for k, i in order:
            add(k, i)
        def cnt(d):
            need = [("a", d >> 1), ("b", d)]
            idx = max(max(p for p, t in enumerate(seq) if t == n) for n in need)
            return len(seq) - 1 - idx
        waits = {-1: cnt(0)}
        plan = {}
        for d in range(ND):
            waits[d] = cnt(d + 1) if d + 1 < ND else None
            pl = []
            if d % 2 == 1 and (d >> 1) + self.NA < ND // 2:
                pl.append(("a", (d >> 1) + self.NA))
            if d + self.NBB < ND:
                pl.append(("b", d + self.NBB))
            plan[d] = pl
            for k, i in pl:
                add(k, i)
        def full(d):
            return len(plan[d]) == (2 if d % 2 else 1)
        nmain = 0
        while nmain < ND and full(nmain):
            nmain += 1
        P = self.period
        wmin = {}
        for d in range(nmain):
            wmin[d % P] = min(wmin.get(d % P, 63), waits[d], 63)
        a(f"s_waitcnt vmcnt({min(waits[-1], 63)})")
        a("s_barrier")
        if work:
            work(-1)
        def step(u):
            a(f"s_waitcnt vmcnt({wmin[u]})")
            a("s_barrier")
            self.l_issue(plan[u])
            if work:
                work(u)
        self._loop(nmain, step, "L")
        for d in range(nmain, ND):
            if waits[d] is not None:
                a(f"s_waitcnt vmcnt({min(waits[d], 63)})")
            a("s_barrier")
            self.l_issue(plan[d])
            if work and d + 1 < ND:
                work(d)
```

```python
import math
PL = 65536
WS_Q = 0
WS_K = 2 << 20
WS_V = 4 << 20
WS_Z1 = 6 << 20
WS_Z2N = 10 << 20
WS_O = 14 << 20
WS_H = 16 << 20
WS_RS = 20 << 20
WS_CS = WS_RS + 32768
WS_LNP = WS_RS + 65536
WS_CNT = 21 << 20
WS_STAMP = 22 << 20
WS_END = 24 << 20
QC = 0.25 * math.log2(math.e)
C_S1, C_S2, C_S3, C_S4, C_S5 = 0, 16, 32, 48, 80
```

```python
from common import *
from g2 import *
import sys

TOFF = float(os.environ.get("TOFF", "100"))
LLIM = 2.0 ** 110
S_X, S_WQKV, S_WO, S_WIN, S_WSP, S_BSP, S_WOUT, S_OUT, S_DBG, S_WS = 4, 6, 8, 12, 14, 16, 18, 20, 22, 24
R_WS, R_A, R_B, R_M = 28, 32, 36, 40
S_IDX, S_WAVE, S_P0, S_P1, S_P2, S_P3, S_LW, S_KA, S_KB, S_IT, S_OK, S_T = 3, 44, 45, 46, 47, 48, 49, 50, 51, 52, 53, 54
S_MA, S_MB = 26, 27
L = V_LANE
LDS_V, LDS_K, LDS_ONES, LDS_VOTE = 0, 32768, 65536, 65536 + 8704
LDS_STA = 74752
LDS_STB, LDS_LNS, LDS_LNQ = 65536, 32768, 36864
S_ONE = 63
POLL_MAX = 20000
GK = dict(s_wave=S_WAVE, s_tmp=S_T, s_it=S_IT, s_lw=S_LW, s_ma=S_MA, s_mb=S_MB)

def poll(a, lbl, rsrd, voff, soff, expect, vt, inv=True):
    a(f"""
    s_mov_b32 s{S_T+8}, 0
    {lbl}_P:
    buffer_load_dword v{vt}, v{voff}, s[{rsrd}:{rsrd+3}], {soff} offen sc1
    s_waitcnt vmcnt(0)
    v_cmp_ne_u32 vcc, {expect}, v{vt}
    s_add_u32 s{S_T+8}, s{S_T+8}, 1
    s_cmp_gt_u32 s{S_T+8}, {POLL_MAX}
    s_cbranch_scc1 {lbl}_X
    s_cbranch_vccz {lbl}_X
    s_sleep 1
    s_branch {lbl}_P
    {lbl}_X:
    """)
    if inv and os.environ.get('INV', '1') == '1':
        a("buffer_inv sc1")
        a("s_waitcnt vmcnt(0)")

def signal(a, s_cnt, vt):
    a(f"""
    s_lshl_b32 s{S_T+8}, s{s_cnt}, 8
    s_add_u32 s{S_T+8}, s{S_T+8}, {WS_CNT}
    v_mov_b32 v{vt}, 1
    v_mov_b32 v{vt+1}, 0
    s_mov_b64 exec, 1
    buffer_atomic_add v{vt}, v{vt+1}, s[{R_WS}:{R_WS+3}], s{S_T+8} offen sc1
    s_mov_b64 exec, -1
    """)

VZ0, VZF = 6, 7

def z0_issue(a):
    srd(a, R_M, S_DBG, S_DBG + 1, 256)
    a(f"buffer_load_dword v{VZF}, v{VZ0}, s[{R_M}:{R_M+3}], 0 offen sc1")

def z0_check(a, lbl):
    a(f"""
    v_cmp_ne_u32 vcc, 1, v{VZF}
    s_nop 4
    s_cbranch_vccz {lbl}_ZOK
    """)
    poll(a, f"{lbl}_Z", R_M, VZ0, 0, 1, VZF, inv=False)
    a(f"{lbl}_ZOK:")

def interleave(a, lists):
    n = max(len(l) for l in lists)
    for q in range(n):
        for l in lists:
            if q < len(l):
                a(l[q])

def bf16r_l(dst, src):
    return [f"v_cvt_pk_bf16_f32 v{dst}, v{src}, v{src}", f"v_lshlrev_b32 v{dst}, 16, v{dst}"]

def rank1(a, g, lds_st, RD, TA, PR, CO, TC):
    mt, nt = g.mt, g.nt
    FB = g.fr
    FA = g.fr + 4 * mt
    RSZ = g.BM * 32
    rows, cols = g.st["rows"], g.st["cols"]
    a(f"""
    s_lshr_b32 s{S_T}, s{S_WAVE}, 1
    s_and_b32 s{S_T+1}, s{S_WAVE}, 1
    s_mul_i32 s{S_T+2}, s{S_T}, {mt*1024}
    s_add_u32 s{S_T+2}, s{S_T+2}, {lds_st}
    s_lshl_b32 s{S_T+3}, s{S_T+1}, 4
    s_mul_i32 s{S_T+1}, s{S_T+1}, {nt*512}
    s_lshl_b32 s{S_T}, s{S_T}, 8
    s_add_u32 s{S_T}, s{S_T}, s{S_T+1}
    s_add_u32 s{S_T}, s{S_T}, {lds_st + RSZ}
    s_waitcnt lgkmcnt(0)
    v_and_b32 v{TA}, 31, v{L}
    v_lshlrev_b32 v{TA}, 5, v{TA}
    v_add_u32 v{TA}, s{S_T+2}, v{TA}
    v_lshrrev_b32 v{TA+2}, 5, v{L}
    v_lshl_add_u32 v{TA+2}, v{TA+2}, 3, v{TA}
    v_add_u32 v{TA+2}, s{S_T+3}, v{TA+2}
    v_lshlrev_b32 v{TA+1}, 2, v{L}
    v_add_u32 v{TA+1}, s{S_T}, v{TA+1}
    """)
    for i in range(mt):
        a(f"ds_write_b64 v{TA+2}, v[{rows[i]}:{rows[i]+1}] offset:{i*1024}")
    for j in range(nt):
        a(f"ds_write_b32 v{TA+1}, v{cols[j]} offset:{j*512}")
    a(f"v_xor_b32 v{TA+1}, 256, v{TA+1}")
    for i in range(mt):
        a(f"v_mov_b32 v{FB+4*i+2}, 0")
        a(f"v_mov_b32 v{FB+4*i+3}, 0")
    for j in range(nt):
        a(f"v_mov_b32 v{FA+4*j+2}, 0")
        a(f"v_mov_b32 v{FA+4*j+3}, 0")
    a("s_waitcnt lgkmcnt(0)")
    a("s_barrier")
    for i in range(mt):
        a(f"ds_read_b128 v[{PR+8*i}:{PR+8*i+3}], v{TA} offset:{i*1024}")
        a(f"ds_read_b128 v[{PR+8*i+4}:{PR+8*i+7}], v{TA} offset:{i*1024+16}")
    for j in range(nt):
        a(f"ds_read_b32 v{CO+j}, v{TA+1} offset:{j*512}")
    a("s_waitcnt lgkmcnt(0)")
    l1, l2 = [], []
    for i in range(mt):
        c, b, q = PR + 8 * i, FB + 4 * i, PR + 8 * i + 1
        l1.append([f"v_pk_add_f32 v[{c}:{c+1}], v[{c}:{c+1}], v[{c+2}:{c+3}]",
                   f"v_pk_add_f32 v[{c+4}:{c+5}], v[{c+4}:{c+5}], v[{c+6}:{c+7}]",
                   f"v_pk_add_f32 v[{c}:{c+1}], v[{c}:{c+1}], v[{c+4}:{c+5}]",
                   f"v_mul_f32 v{c}, {f32(1.0/512)}, v{c}",
                   f"v_cvt_pk_bf16_f32 v{b}, -v{c}, -v{c}",
                   f"v_cvt_pk_bf16_f32 v{b+1}, -v{c}, -v{c}"])
        l2.append([f"v_mul_f32 v{q}, {f32(1.0/512)}, v{q}",
                   f"v_fma_f32 v{q}, -v{c}, v{c}, v{q}",
                   f"v_max_f32 v{q}, 0, v{q}"] + bf16r_l(q, q) + [f"v_add_f32 v{q}, {f32(1e-5)}, v{q}"] + bf16r_l(q, q) +
                  [f"v_sqrt_f32 v{q}, v{q}"] + bf16r_l(q, q) + [f"v_rcp_f32 v{RD+2*i}, v{q}", f"v_rcp_f32 v{RD+2*i+1}, v{q}"])
    for j in range(nt):
        c, d, C = CO + j, FA + 4 * j, TC + 3 * j
        l1.append([f"v_add_f32 v{c}, v{c}, v{cols[j]}",
                   f"v_cvt_pk_bf16_f32 v{C}, v{c}, v{c}",
                   f"v_lshlrev_b32 v{C}, 16, v{C}",
                   f"v_sub_f32 v{C+1}, v{c}, v{C}",
                   f"v_cvt_pk_bf16_f32 v{d}, v{C}, v{C+1}",
                   f"v_and_b32 v{C+2}, 0xffff0000, v{d}",
                   f"v_sub_f32 v{C+1}, v{C+1}, v{C+2}",
                   f"v_cvt_pk_bf16_f32 v{d+1}, v{C+1}, 0"])
    interleave(a, l1)
    for j in range(nt):
        for i in range(mt):
            dd = g.acc + (j * mt + i) * 16
            a(f"v_mfma_f32_32x32x16_bf16 v[{dd}:{dd+15}], v[{FA+4*j}:{FA+4*j+3}], v[{FB+4*i}:{FB+4*i+3}], v[{dd}:{dd+15}]")
    interleave(a, l2)

def gA1(a):
    return G2(a, "A1", BM=64, NT=6, mt=1, nt=3, NA=2, NBB=4, ND=16, lds_a=0, lds_b=16384, acc=16, fr=64, va=4, vb=8,
              st=dict(vb1=11, rows=[14], cols=[0, 2, 3]), s_one=S_ONE, **GK)

def a_params(a):
    a(f"""
    s_bfe_u32 s{S_P0}, s{S_IDX}, 0x20001
    s_lshl_b32 s{S_P0}, s{S_P0}, 3
    s_bfe_u32 s{S_T}, s{S_IDX}, 0x30003
    s_add_u32 s{S_P0}, s{S_P0}, s{S_T}
    s_and_b32 s{S_P1}, s{S_IDX}, 1
    s_lshl_b32 s{S_P1}, s{S_P1}, 2
    s_lshr_b32 s{S_T}, s{S_IDX}, 6
    s_add_u32 s{S_P1}, s{S_P1}, s{S_T}
    s_and_b32 s{S_P2}, s{S_IDX}, 7
    s_lshl_b32 s{S_P2}, s{S_P2}, 2
    s_bfe_u32 s{S_T}, s{S_IDX}, 0x20003
    s_add_u32 s{S_P2}, s{S_P2}, s{S_T}
    s_lshr_b32 s{S_P3}, s{S_IDX}, 5
    """)

def a_loader(a):
    g = gA1(a)
    a("s_setprio 3")
    loader_lane_setup(a, 60)
    g.l_setup_a(8, 1024, 60)
    g.l_setup_b(12, 3072, 60)
    g.l_bind(R_A, R_B, S_KA, S_KB)
    a(f"""
    v_mov_b32 v{VZ0}, 0
    s_lshl_b32 s{S_KA}, s{S_P0}, 16
    s_mul_i32 s{S_KB}, s{S_P1}, 384
    s_waitcnt lgkmcnt(0)
    """)
    srd(a, R_A, S_X, S_X + 1, 2048 * 1024)
    srd(a, R_B, S_WQKV, S_WQKV + 1, 512 * 3072)
    order = g.pro_order()
    g.l_issue(order)
    srd(a, R_WS, S_WS, S_WS + 1, WS_END)
    stamp(a, 1)
    g.l_run(order)
    z0_issue(a)
    a("s_barrier")
    stamp(a, 2)
    a(f"""
    v_and_b32 v62, 15, v{L}
    v_lshlrev_b32 v62, 8, v62
    s_waitcnt vmcnt(0)
    s_barrier
    s_cmp_eq_u32 s{S_LW}, 0
    s_cbranch_scc0 AT_START
    """)
    stamp(a, 3)
    z0_check(a, "AL")
    a(f"s_and_b32 s{S_T}, s{S_IDX}, 15")
    signal(a, S_T, 60)
    a(f"s_mov_b32 s{S_T+1}, {WS_CNT + C_S1*256}")
    poll(a, "AL_S1", R_WS, 62, f"s{S_T+1}", 16, 60)
    a("s_branch AT_START")

def a_compute(a):
    g = gA1(a)
    T = 80
    a("s_setprio 2")
    a(f"""
    v_mov_b32 v{T}, 0x3f803f80
    v_mov_b32 v{T+1}, 0x3f803f80
    v_mov_b32 v{T+2}, 0x3f803f80
    v_mov_b32 v{T+3}, 0x3f803f80
    v_lshlrev_b32 v{T+4}, 4, v0
    v_add_u32 v{T+4}, {LDS_ONES}, v{T+4}
    ds_write_b128 v{T+4}, v[{T}:{T+3}]
    ds_write_b128 v{T+4}, v[{T}:{T+3}] offset:4096
    ds_write_b128 v{T+4}, v[{T}:{T+3}] offset:4608
    """)
    compute_lane_setup(a, T + 8)
    g.c_setup()
    g.zero_acc()
    a("s_waitcnt lgkmcnt(0)")
    srd(a, R_WS, S_WS, S_WS + 1, WS_END)
    a(f"""
    s_or_b32 s{S_OK}, s2, s{S_WAVE}
    s_cmp_eq_u32 s{S_OK}, 0
    s_cbranch_scc0 AC_NOZ
    v_lshlrev_b32 v{T}, 8, v{L}
    v_mov_b32 v{T+1}, 0
    v_mov_b32 v{T+2}, 1
    s_mov_b32 s{S_T}, {WS_CNT}
    s_mov_b32 s{S_T+1}, {WS_CNT + 16384}
    buffer_store_dword v{T+1}, v{T}, s[{R_WS}:{R_WS+3}], s{S_T} offen sc1
    buffer_store_dword v{T+1}, v{T}, s[{R_WS}:{R_WS+3}], s{S_T+1} offen sc1
    AC_NOZ:
    """)
    srd(a, R_M, S_DBG, S_DBG + 1, 256)
    def flag():
        a(f"""
        s_cmp_eq_u32 s{S_OK}, 0
        s_cbranch_scc0 AC_NOZ2
        s_waitcnt vmcnt(0)
        s_mov_b64 exec, 1
        buffer_store_dword v{T+2}, v{T+1}, s[{R_M}:{R_M+3}], 0 offen sc1
        s_mov_b64 exec, -1
        AC_NOZ2:
        """)
    stamp(a, 1)
    g.c_run(per=6, after_first=flag)
    stamp(a, 2)
    RD = 14
    rank1(a, g, LDS_STA, RD, 80, 96, 84, 104)
    stamp(a, 3)
    a(f"""
    s_lshr_b32 s{S_T}, s{S_WAVE}, 1
    s_lshl_b32 s{S_T}, s{S_T}, 5
    s_lshl_b32 s{S_T+1}, s{S_P0}, 6
    s_add_u32 s{S_T}, s{S_T}, s{S_T+1}
    v_and_b32 v12, 31, v{L}
    v_add_u32 v12, s{S_T}, v12
    v_lshlrev_b32 v12, 5, v12
    v_lshrrev_b32 v13, 5, v{L}
    v_lshl_add_u32 v12, v13, 4, v12
    s_mul_i32 s{S_T}, s{S_P1}, 6
    s_and_b32 s{S_T+1}, s{S_WAVE}, 1
    s_mul_i32 s{S_T+1}, s{S_T+1}, 3
    s_add_u32 s{S_T}, s{S_T}, s{S_T+1}
    s_mov_b32 s{S_T+2}, {f32(QC)}
    s_mov_b32 s{S_T+3}, {f32(QC)}
    """)
    for j in range(3):
        d = g.acc + 16 * j
        o = 104 + 8 * j
        for p in range(8):
            r = d + 2 * p
            a(f"v_pk_mul_f32 v[{r}:{r+1}], v[{r}:{r+1}], v[{RD}:{RD+1}]")
            a(f"v_cvt_pk_bf16_f32 v{o+p}, v{r}, v{r+1}")
        a(f"""
        s_lshl_b32 s{S_T+4}, s{S_T}, 17
        s_add_u32 s{S_T+5}, s{S_T+4}, 65536
        s_cmp_lt_u32 s{S_T}, 16
        s_cbranch_scc0 AC_NQ{j}
        """)
        for p in range(8):
            r = d + 2 * p
            a(f"v_lshlrev_b32 v{r}, 16, v{o+p}")
            a(f"v_and_b32 v{r+1}, 0xffff0000, v{o+p}")
            a(f"v_pk_mul_f32 v[{r}:{r+1}], v[{r}:{r+1}], s[{S_T+2}:{S_T+3}]")
            a(f"v_cvt_pk_bf16_f32 v{o+p}, v{r}, v{r+1}")
        a(f"""
        AC_NQ{j}:
        buffer_store_dwordx4 v[{o}:{o+3}], v12, s[{R_WS}:{R_WS+3}], s{S_T+4} offen sc1
        buffer_store_dwordx4 v[{o+4}:{o+7}], v12, s[{R_WS}:{R_WS+3}], s{S_T+5} offen sc1
        s_add_u32 s{S_T}, s{S_T}, 1
        """)
    a("s_waitcnt vmcnt(0)")
    a("s_barrier")
    attention(a)

def attention(a):
    S_C, S_MODE, S_M0 = S_IT, S_OK, S_MA
    VKA, VVA, VINC, VROW, VDK, VDV = 2, 3, 4, 5, 6, 7
    S_, P, O, C, Q, KF, VF, T = 16, 48, 56, 72, 88, 92, 100, 116
    a("AT_START:")
    a(f"""
    s_mov_b32 s{S_MODE}, 0
    v_and_b32 v{T}, 31, v{L}
    s_lshl_b32 s{S_T}, s{S_WAVE}, 5
    v_add_u32 v{T}, s{S_T}, v{T}
    v_lshlrev_b32 v{T}, 5, v{T}
    v_lshrrev_b32 v{T+1}, 5, v{L}
    v_lshl_add_u32 v{VROW}, v{T+1}, 4, v{T}
    v_lshrrev_b32 v{T}, 1, v{L}
    v_lshlrev_b32 v{T}, 5, v{T}
    v_bfe_u32 v{T+1}, v{L}, 4, 1
    v_xor_b32 v{T+1}, v{T+1}, v{L}
    v_and_b32 v{T+1}, 1, v{T+1}
    v_lshl_add_u32 v{VDK}, v{T+1}, 4, v{T}
    v_lshlrev_b32 v{VDV}, 4, v{L}
    v_add_u32 v{VDV}, {WS_V - WS_K}, v{VDV}
    s_lshl_b32 s{S_T+2}, s{S_P2}, 16
    s_lshl_b32 s{S_T+3}, s{S_P3}, 13
    s_add_u32 s{S_T+3}, s{S_T+3}, s{S_T+2}
    """)
    srd(a, R_A, S_WS, S_WS + 1, WS_END)
    a("s_barrier")
    a("s_setprio 0")
    stamp(a, 4)
    a(f"buffer_load_dwordx4 v[{Q}:{Q+3}], v{VROW}, s[{R_WS}:{R_WS+3}], s{S_T+3} offen")
    def dma_chunk():
        return [f"s_add_u32 m0, s{S_M0}, {LDS_K}",
                f"buffer_load_dwordx4 v{VDK}, s[{R_A}:{R_A+3}], s{S_KA} offen lds",
                f"s_add_u32 m0, s{S_M0}, {LDS_V}",
                f"buffer_load_dwordx4 v{VDV}, s[{R_A}:{R_A+3}], s{S_KA} offen lds",
                f"s_add_u32 s{S_KA}, s{S_KA}, 8192",
                f"s_add_u32 s{S_M0}, s{S_M0}, 8192",
                f"s_and_b32 s{S_M0}, s{S_M0}, 0x7fff"]
    a("AT_RESTART:")
    a(f"""
    s_lshl_b32 s{S_M0}, s{S_WAVE}, 10
    s_add_u32 s{S_KA}, s{S_T+2}, s{S_M0}
    s_add_u32 s{S_KA}, s{S_KA}, {WS_K}
    s_mov_b32 s{R_A+2}, {WS_END}
    """)
    for c in range(3):
        for ins in dma_chunk():
            a(ins)
    a(f"""
    v_and_b32 v{T}, 19, v{L}
    v_bfe_u32 v{T+1}, v{L}, 2, 1
    v_lshl_add_u32 v{T}, v{T+1}, 3, v{T}
    v_bfe_u32 v{T+2}, v{L}, 3, 1
    v_lshl_add_u32 v{T}, v{T+2}, 2, v{T}
    v_lshlrev_b32 v{T}, 5, v{T}
    v_lshrrev_b32 v{T+2}, 5, v{L}
    v_xor_b32 v{T+1}, v{T+1}, v{T+2}
    v_lshl_add_u32 v{VKA}, v{T+1}, 4, v{T}
    v_bfe_u32 v{T}, v{L}, 2, 2
    v_lshl_add_u32 v{T}, v{T+2}, 3, v{T}
    v_lshlrev_b32 v{T}, 5, v{T}
    v_and_b32 v{T+1}, 1, v{L}
    v_lshl_add_u32 v{T}, v{T+1}, 4, v{T}
    v_bfe_u32 v{T+1}, v{L}, 1, 1
    v_lshl_add_u32 v{T}, v{T+1}, 3, v{T}
    v_bfe_u32 v{T+1}, v{L}, 4, 1
    v_cmp_eq_u32 vcc, 1, v{T+1}
    v_add_u32 v{T+1}, {LDS_ONES + 128}, v{T}
    v_cndmask_b32 v{VVA}, v{T}, v{T+1}, vcc
    v_mov_b32 v{T+1}, 8192
    v_cndmask_b32 v{VINC}, v{T+1}, 0, vcc
    """)
    for r in list(range(O, O + 16)) + list(range(P, P + 8)) + list(range(VF + 8, VF + 16)):
        a(f"v_mov_b32 v{r}, 0")
    a("s_waitcnt vmcnt(4)")
    a("s_barrier")
    stamp(a, 5)
    def kread(p, kt):
        return f"ds_read_b128 v[{KF+4*p}:{KF+4*p+3}], v{VKA} offset:{LDS_K+1024*kt}"
    def vreads(p, kt):
        return [f"ds_read_b64_tr_b16 v[{VF+8*p+4*u+2*t}:{VF+8*p+4*u+2*t+1}], v{VVA} offset:{1024*kt+512*u+128*t}" for u in range(2) for t in range(2)]
    def qk(sp, p, useC=True):
        c = f"v[{C}:{C+15}]" if useC else "0"
        S = S_ + 16 * sp
        return f"v_mfma_f32_32x32x16_bf16 v[{S}:{S+15}], v[{KF+4*p}:{KF+4*p+3}], v[{Q}:{Q+3}], {c}"
    def pv(p, u):
        return f"v_mfma_f32_32x32x16_bf16 v[{O}:{O+15}], v[{VF+8*p+4*u}:{VF+8*p+4*u+3}], v[{P+4*u}:{P+4*u+3}], v[{O}:{O+15}]"
    a(kread(0, 0))
    a(kread(1, 1))
    a(f"s_cmp_eq_u32 s{S_MODE}, 1")
    a("s_waitcnt lgkmcnt(0)")
    a("s_cbranch_scc1 AT_HAVE_M")
    a(qk(0, 0, False))
    a(qk(1, 1, False))
    a(f"v_max3_f32 v{T}, v{S_}, v{S_+1}, v{S_+2}")
    for i in range(3, 31, 2):
        a(f"v_max3_f32 v{T}, v{T}, v{S_+i}, v{S_+i+1}")
    a(f"v_max_f32 v{T}, v{T}, v{S_+31}")
    a(f"s_mov_b32 s{S_T}, {f32(-TOFF)}")
    a("AT_FINM:")
    a(f"v_mov_b32 v{T+2}, v{T}")
    a(f"v_permlane32_swap_b32 v{T}, v{T+2}")
    a(f"v_max_f32 v{T}, v{T}, v{T+2}")
    a(f"v_sub_f32 v{C}, s{S_T}, v{T}")
    for i in range(1, 16):
        a(f"v_mov_b32 v{C+i}, v{C}")
    a(f"""
    s_cmp_eq_u32 s{S_MODE}, 0
    s_cbranch_scc1 AT_HAVE_M
    s_barrier
    s_branch AT_RESTART
    AT_HAVE_M:
    """)
    a(qk(0, 0))
    a(f"s_mov_b32 s{S_C}, 0")
    a("AT_LOOP:")
    for kt in range(8):
        p = kt & 1
        S = S_ + 16 * p
        extra = []
        if kt == 0:
            a("s_waitcnt vmcnt(2) lgkmcnt(0)")
            a("s_barrier")
        else:
            a("s_waitcnt lgkmcnt(0)")
        a(qk(1 - p, 1 - p))
        extra += vreads(p, kt)
        if kt == 6:
            extra += [f"v_add_u32 v{VKA}, 8192, v{VKA}", f"v_and_b32 v{VKA}, 0x7fff, v{VKA}"]
        extra += [kread(p, (kt + 2) % 8)]
        if kt == 7:
            extra += [f"v_add_u32 v{VVA}, v{VINC}, v{VVA}", f"v_and_b32 v{VVA}, 0x17fff, v{VVA}",
                      f"s_add_u32 s{S_C}, s{S_C}, 1", f"s_cmp_lt_u32 s{S_C}, 8"]
        if kt == 0:
            extra += [f"s_cmp_lt_u32 s{S_C}, 5", f"s_cselect_b32 s{R_A+2}, {WS_END}, 0"] + dma_chunk()
        ex = [f"v_exp_f32 v{S+i}, v{S+i}" for i in range(16)]
        cv = [f"v_cvt_pk_bf16_f32 v{P+i}, v{S+2*i}, v{S+2*i+1}" for i in range(8)]
        seq = ex[:4] + [pv(1 - p, 0)] + ex[4:8] + [pv(1 - p, 1)] + ex[8:] + cv
        for ins in seq:
            a(ins)
            if extra and ins.startswith("v_exp"):
                a(extra.pop(0))
        for e in extra:
            a(e)
    a("s_cbranch_scc1 AT_LOOP")
    a("s_waitcnt lgkmcnt(0)")
    a(pv(1, 0))
    a(pv(1, 1))
    stamp(a, 6)
    a(f"""
    s_cmp_eq_u32 s{S_MODE}, 1
    s_cbranch_scc1 AT_FIN
    s_mov_b32 s{S_T+6}, {f32(LLIM)}
    v_cmp_nlt_f32 vcc, v{O+8}, s{S_T+6}
    v_add_f32 v{T+2}, abs(v{O}), abs(v{O+1})
    """)
    for i in range(2, 8):
        a(f"v_add_f32 v{T+2}, v{T+2}, abs(v{O+i})")
    a(f"""
    s_mov_b32 s{S_T+6}, 0x203
    v_cmp_class_f32 s[{S_T+4}:{S_T+5}], v{T+2}, s{S_T+6}
    s_or_b64 vcc, vcc, s[{S_T+4}:{S_T+5}]
    s_cmp_lg_u64 vcc, 0
    s_cselect_b32 s{S_T}, 1, 0
    v_mov_b32 v{T}, s{S_T}
    s_lshl_b32 s{S_T+1}, s{S_WAVE}, 2
    s_add_u32 s{S_T+1}, s{S_T+1}, {LDS_VOTE}
    v_mov_b32 v{T+1}, s{S_T+1}
    ds_write_b32 v{T+1}, v{T}
    s_waitcnt vmcnt(0) lgkmcnt(0)
    s_barrier
    v_and_b32 v{T+1}, 7, v{L}
    v_lshlrev_b32 v{T+1}, 2, v{T+1}
    v_add_u32 v{T+1}, {LDS_VOTE}, v{T+1}
    ds_read_b32 v{T}, v{T+1}
    s_waitcnt lgkmcnt(0)
    v_cmp_ne_u32 vcc, 0, v{T}
    s_nop 4
    s_cbranch_vccz AT_FIN
    s_mov_b32 s{S_MODE}, 1
    v_and_b32 v{T+4}, 31, v{L}
    v_lshlrev_b32 v{T+4}, 5, v{T+4}
    v_lshrrev_b32 v{T+5}, 5, v{L}
    v_lshl_add_u32 v{T+4}, v{T+5}, 4, v{T+4}
    s_add_u32 s{S_T}, s{S_T+2}, {WS_K}
    s_mov_b32 s{S_T+1}, 0
    v_mov_b32 v{T}, 0xff800000
    AT_MAXLOOP:
    buffer_load_dwordx4 v[{KF}:{KF+3}], v{T+4}, s[{R_WS}:{R_WS+3}], s{S_T} offen
    s_waitcnt vmcnt(0)
    """)
    a(qk(0, 0, False))
    for i in range(0, 16, 2):
        a(f"v_max3_f32 v{T}, v{T}, v{S_+i}, v{S_+i+1}")
    a(f"""
    s_add_u32 s{S_T}, s{S_T}, 1024
    s_add_u32 s{S_T+1}, s{S_T+1}, 1
    s_cmp_lt_u32 s{S_T+1}, 64
    s_cbranch_scc1 AT_MAXLOOP
    s_mov_b32 s{S_T}, 0
    s_branch AT_FINM
    AT_FIN:
    v_rcp_f32 v{T}, v{O+8}
    s_add_u32 s{S_T}, s{S_T+3}, {WS_O}
    v_mov_b32 v{T+1}, v{T}
    """)
    for i in range(4):
        a(f"v_pk_mul_f32 v[{O+2*i}:{O+2*i+1}], v[{O+2*i}:{O+2*i+1}], v[{T}:{T+1}]")
        a(f"v_cvt_pk_bf16_f32 v{P+i}, v{O+2*i}, v{O+2*i+1}")
    a(f"""
    buffer_store_dwordx4 v[{P}:{P+3}], v{VROW}, s[{R_WS}:{R_WS+3}], s{S_T} offen sc1
    s_lshl_b32 s{S_T}, s{S_P3}, 1
    s_lshr_b32 s{S_T+1}, s{S_P2}, 4
    s_add_u32 s{S_T}, s{S_T}, s{S_T+1}
    s_add_u32 s{S_T}, s{S_T}, {C_S5}
    s_waitcnt vmcnt(0)
    s_barrier
    s_cmp_eq_u32 s{S_WAVE}, 0
    s_cbranch_scc0 AT_END
    """)
    signal(a, S_T, T)
    a("AT_END:")
    if STAMP:
        a(f"s_mov_b32 s{70+2*12}, s{S_MODE}")
    stamp_flush(a, R_WS, S_WAVE, vbase=16)
    a("s_endpgm")
```

```python
from mega import *

def gZ(a):
    return G2(a, "B1", BM=128, NT=4, mt=2, nt=2, NA=2, NBB=4, ND=16, lds_a=0, lds_b=32768, acc=16, fr=80, va=4, vb=8, G=1,
              st=dict(vb1=10, rows=[120, 122], cols=[124, 125]), s_one=S_ONE, **GK)
def gS(a):
    return G2(a, "B2", BM=64, NT=4, mt=1, nt=2, NA=3, NBB=6, ND=64, lds_a=0, lds_b=24576, acc=16, fr=48, va=4, vb=8, **GK)
def gH(a):
    return G2(a, "B3", BM=64, NT=2, mt=1, nt=1, NA=4, NBB=8, ND=28, lds_a=0, lds_b=32768, acc=16, fr=48, va=4, vb=8, **GK)
def gF(a):
    return G2(a, "B4", BM=64, NT=2, mt=1, nt=1, NA=6, NBB=8, ND=16, lds_a=0, lds_b=49152, acc=16, fr=48, va=4, vb=8, **GK)

def b_params(a):
    a(f"""
    s_bfe_u32 s{S_P0}, s{S_IDX}, 0x20001
    s_lshl_b32 s{S_P0}, s{S_P0}, 2
    s_bfe_u32 s{S_T}, s{S_IDX}, 0x20003
    s_add_u32 s{S_P0}, s{S_P0}, s{S_T}
    s_and_b32 s{S_P1}, s{S_IDX}, 1
    s_mul_i32 s{S_P1}, s{S_P1}, 7
    s_lshr_b32 s{S_P3}, s{S_IDX}, 5
    s_add_u32 s{S_P1}, s{S_P1}, s{S_P3}
    s_and_b32 s{S_P2}, s{S_IDX}, 7
    s_lshl_b32 s{S_P2}, s{S_P2}, 2
    s_add_u32 s{S_P2}, s{S_P2}, s{S_T}
    """)

def b_loader(a):
    g, gs, gh, gf = gZ(a), gS(a), gH(a), gF(a)
    VP16, VL16 = 5, 16
    a("s_setprio 3")
    loader_lane_setup(a, 60)
    a(f"""
    v_and_b32 v{VP16}, 15, v{L}
    v_lshlrev_b32 v{VP16}, 8, v{VP16}
    v_lshlrev_b32 v{VL16}, 4, v{L}
    v_mov_b32 v{VZ0}, 0
    v_mov_b32 v{VZF}, 0
    s_cmp_lt_u32 s{S_IDX}, 224
    s_cbranch_scc1 BL_Z
    s_waitcnt lgkmcnt(0)
    """)
    srd(a, R_WS, S_WS, S_WS + 1, WS_END)
    srd(a, R_M, S_DBG, S_DBG + 1, 256)
    a("s_branch BL_H")
    a("BL_Z:")
    g.l_setup_a(8, 1024, 60)
    g.l_setup_b(12, 3584, 60)
    g.l_bind(R_A, R_B, S_KA, S_KB)
    a(f"""
    s_lshl_b32 s{S_KA}, s{S_P0}, 17
    s_lshl_b32 s{S_KB}, s{S_P1}, 8
    s_waitcnt lgkmcnt(0)
    """)
    srd(a, R_A, S_X, S_X + 1, 2048 * 1024)
    srd(a, R_B, S_WIN, S_WIN + 1, 512 * 3584)
    order = g.pro_order()
    g.l_issue(order)
    srd(a, R_WS, S_WS, S_WS + 1, WS_END)
    stamp(a, 1)
    g.l_run(order)
    z0_issue(a)
    gs.l_setup_a(8, 4096, 60)
    gs.l_setup_b(12, None, 60)
    gs.l_bind(R_A, R_WS, S_KA, S_KB)
    srd(a, R_A, S_WSP, S_WSP + 1, 2048 * 4096)
    a(f"""
    s_lshl_b32 s{S_KA}, s{S_P2}, 18
    s_lshl_b32 s{S_KB}, s{S_P3}, 19
    s_add_u32 s{S_KB}, s{S_KB}, {WS_Z2N - BIAS}
    s_cmp_lt_u32 s{S_P1}, 7
    s_cselect_b32 s{S_T}, 1, s{S_LW}
    s_cmp_eq_u32 s{S_T}, 0
    s_cbranch_scc1 BL_MLN
    """)
    oa, ob = gs.pro_order("a"), gs.pro_order("b")
    gs.l_issue(oa)
    a(f"""
    s_barrier
    s_cmp_lt_u32 s{S_P1}, 7
    s_cbranch_scc1 BL_NOLN
    s_barrier
    s_barrier
    s_branch BL_NOLN
    BL_MLN:
    s_barrier
    v_add_u32 v60, {LDS_LNS}, v{VL16}
    s_mul_i32 s{S_T}, s{S_P0}, 7168
    s_add_u32 s{S_T}, s{S_T}, {WS_LNP}
    s_sub_u32 s{S_T+1}, s{S_P1}, 7
    s_lshl_b32 s{S_T+1}, s{S_T+1}, 10
    s_add_u32 s{S_T+1}, s{S_T+1}, s{S_T}
    s_add_u32 s{S_T+2}, s{S_P0}, {C_S2}
    s_lshl_b32 s{S_T+3}, s{S_T+2}, 8
    s_add_u32 s{S_T+3}, s{S_T+3}, {WS_CNT}
    s_waitcnt vmcnt(0)
    """)
    stamp(a, 2)
    z0_check(a, "BLA")
    a(f"""
    s_barrier
    ds_read_b128 v[64:67], v60
    ds_read_b128 v[68:71], v60 offset:1024
    ds_read_b128 v[72:75], v60 offset:2048
    ds_read_b128 v[76:79], v60 offset:3072
    s_waitcnt lgkmcnt(0)
    v_pk_add_f32 v[64:65], v[64:65], v[68:69]
    v_pk_add_f32 v[66:67], v[66:67], v[70:71]
    v_pk_add_f32 v[72:73], v[72:73], v[76:77]
    v_pk_add_f32 v[74:75], v[74:75], v[78:79]
    v_pk_add_f32 v[64:65], v[64:65], v[72:73]
    v_pk_add_f32 v[66:67], v[66:67], v[74:75]
    buffer_store_dwordx4 v[64:67], v{VL16}, s[{R_WS}:{R_WS+3}], s{S_T+1} offen sc1
    s_waitcnt vmcnt(0)
    """)
    stamp(a, 3)
    signal(a, S_T + 2, 60)
    poll(a, "BL_S2", R_WS, VZ0, f"s{S_T+3}", 7, 60, inv=False)
    a(f"s_mov_b32 m0, {LDS_LNQ}")
    for e in range(4):
        a(f"buffer_load_dwordx4 v{VL16}, s[{R_WS}:{R_WS+3}], s{S_T} offen offset:{e*1024} sc1 lds")
    a(f"s_mov_b32 m0, {LDS_LNQ+4096}")
    a(f"s_add_u32 s{S_T}, s{S_T}, 4096")
    for e in range(3):
        a(f"buffer_load_dwordx4 v{VL16}, s[{R_WS}:{R_WS+3}], s{S_T} offen offset:{e*1024} sc1 lds")
    a(f"""
    s_waitcnt vmcnt(0)
    s_barrier
    """)
    stamp(a, 4)
    gs.l_issue(oa)
    a(f"""
    BL_NOLN:
    s_and_b32 s{S_T}, s{S_IDX}, 15
    s_add_u32 s{S_T}, s{S_T}, {C_S3}
    s_mov_b32 s{S_T+1}, {WS_CNT + C_S3*256}
    s_barrier
    s_cmp_eq_u32 s{S_LW}, 0
    s_cbranch_scc0 BL_G3
    s_waitcnt vmcnt({len(oa)*gs.qa})
    """)
    stamp(a, 5)
    z0_check(a, "BLB")
    signal(a, S_T, 60)
    poll(a, "BL_S3", R_WS, VP16, f"s{S_T+1}", 14, 60)
    a("BL_G3:")
    a("s_barrier")
    stamp(a, 6)
    gs.l_issue(ob)
    gs.l_run(oa + ob)
    stamp(a, 7)
    a("BL_H:")
    gh.l_setup_a(8, None, 60)
    gh.l_setup_b(12, 1024, 60)
    gh.l_bind(R_WS, R_B, S_KA, S_KB)
    srd(a, R_B, S_WOUT, S_WOUT + 1, 896 * 1024)
    a(f"""
    s_lshl_b32 s{S_KA}, s{S_P2}, 11
    s_add_u32 s{S_KA}, s{S_KA}, {WS_H - BIAS}
    s_lshl_b32 s{S_KB}, s{S_P3}, 7
    """)
    oa, ob = gh.pro_order("a"), gh.pro_order("b")
    gh.l_issue(ob)
    a(f"""
    s_add_u32 s{S_T}, s{S_P2}, {C_S4}
    s_lshl_b32 s{S_T+1}, s{S_T}, 8
    s_add_u32 s{S_T+1}, s{S_T+1}, {WS_CNT}
    s_cmp_lt_u32 s{S_IDX}, 224
    s_cbranch_scc0 BL_NS4
    s_barrier
    s_cmp_eq_u32 s{S_LW}, 0
    s_cbranch_scc0 BL_G4
    """)
    signal(a, S_T, 60)
    a(f"""
    BL_NS4:
    s_cmp_eq_u32 s{S_LW}, 0
    s_cbranch_scc0 BL_G4
    """)
    stamp(a, 8)
    z0_check(a, "BLC")
    poll(a, "BL_S4", R_WS, VZ0, f"s{S_T+1}", 7, 60)
    a("BL_G4:")
    a("s_barrier")
    stamp(a, 9)
    gh.l_issue(oa)
    gh.l_run(ob + oa)
    for k in ("vda", "vdb", "ka_step", "kb_step", "b_imm"):
        setattr(gf, k, getattr(gh, k))
    gf.l_bind(R_WS, R_B, S_KA, S_KB)
    srd(a, R_B, S_WO, S_WO + 1, 512 * 1024)
    a(f"""
    s_lshl_b32 s{S_KA}, s{S_P2}, 11
    s_add_u32 s{S_KA}, s{S_KA}, {WS_O - BIAS}
    s_lshl_b32 s{S_KB}, s{S_P3}, 7
    v_and_b32 v61, 1, v{L}
    v_lshlrev_b32 v61, 8, v61
    s_and_b32 s{S_T+1}, s{S_IDX}, 7
    s_lshl_b32 s{S_T+1}, s{S_T+1}, 9
    s_add_u32 s{S_T+1}, s{S_T+1}, {WS_CNT + C_S5*256}
    """)
    oa, ob = gf.pro_order("a"), gf.pro_order("b")
    gf.l_issue(ob)
    stamp(a, 10)
    a(f"""
    s_cmp_eq_u32 s{S_LW}, 0
    s_cbranch_scc0 BL_G5
    """)
    poll(a, "BL_S5", R_WS, 61, f"s{S_T+1}", 16, 60)
    a("BL_G5:")
    a("s_barrier")
    stamp(a, 11)
    gf.l_issue(oa)
    gf.l_run(ob + oa)
    stamp_flush(a, R_WS, S_WAVE)
    a("s_endpgm")


def b_compute(a):
    g, gs, gh, gf = gZ(a), gS(a), gH(a), gF(a)
    T = 112
    a("s_setprio 1")
    compute_lane_setup(a, T)
    VR = 12
    a(f"""
    s_lshr_b32 s{S_T}, s{S_WAVE}, 1
    s_lshl_b32 s{S_T}, s{S_T}, 5
    s_lshl_b32 s{S_T+1}, s{S_P2}, 6
    s_add_u32 s{S_T}, s{S_T}, s{S_T+1}
    v_and_b32 v{T}, 31, v{L}
    v_add_u32 v{VR+1}, s{S_T}, v{T}
    v_lshrrev_b32 v{T+1}, 5, v{L}
    v_lshlrev_b32 v{T+1}, 4, v{T+1}
    v_lshl_add_u32 v{VR}, v{VR+1}, 5, v{T+1}
    v_lshl_add_u32 v{VR+2}, v{VR+1}, 10, v{T+1}
    s_waitcnt lgkmcnt(0)
    """)
    srd(a, R_WS, S_WS, S_WS + 1, WS_END)
    a(f"""
    s_cmp_lt_u32 s{S_IDX}, 224
    s_cbranch_scc0 BC_H
    """)
    g.c_setup()
    g.zero_acc()
    stamp(a, 1)
    g.c_run(per=5)
    stamp(a, 2)
    RD = 4
    rank1(a, g, LDS_STB, RD, 112, 96, 126, 114)
    stamp(a, 3)
    K0 = -2.0 * 0.7978845608028654 * 1.4426950408889634
    K1c = K0 * 0.044715
    PK, t = 80, 112
    U = 116
    a(f"""
    s_mov_b32 s{S_T+2}, {f32(K1c)}
    s_mov_b32 s{S_T+3}, {f32(K1c)}
    v_mov_b32 v{U+4}, {f32(K0)}
    v_mov_b32 v{U+5}, {f32(K0)}
    s_lshr_b32 s{S_T}, s{S_WAVE}, 1
    s_lshl_b32 s{S_T}, s{S_T}, 6
    v_and_b32 v{U+6}, 31, v{L}
    v_add_u32 v{U+6}, s{S_T}, v{U+6}
    s_lshl_b32 s{S_T+1}, s{S_P0}, 7
    v_add_u32 v{U+7}, s{S_T+1}, v{U+6}
    v_lshrrev_b32 v{U+8}, 5, v{L}
    v_lshlrev_b32 v{U+7}, 5, v{U+7}
    v_lshl_add_u32 v{U+7}, v{U+8}, 4, v{U+7}
    """)
    for j in range(2):
        for i in range(2):
            d = g.acc + (j * 2 + i) * 16
            for hf in range(2):
                o = PK + (j * 2 + i) * 8 + hf * 4
                rs = [d + hf * 8 + 2 * p for p in range(4)]
                for p, r in enumerate(rs):
                    a(f"v_pk_mul_f32 v[{r}:{r+1}], v[{r}:{r+1}], v[{RD+2*i}:{RD+2*i+1}]")
                for p, r in enumerate(rs):
                    a(f"v_cvt_pk_bf16_f32 v{o+p}, v{r}, v{r+1}")
                for p, r in enumerate(rs):
                    a(f"v_lshlrev_b32 v{r}, 16, v{o+p}")
                    a(f"v_and_b32 v{r+1}, 0xffff0000, v{o+p}")
                for p, r in enumerate(rs):
                    a(f"v_pk_mul_f32 v[{t+2*p}:{t+2*p+1}], v[{r}:{r+1}], v[{r}:{r+1}]")
                for p, r in enumerate(rs):
                    a(f"v_pk_fma_f32 v[{t+2*p}:{t+2*p+1}], v[{t+2*p}:{t+2*p+1}], s[{S_T+2}:{S_T+3}], v[{U+4}:{U+5}]")
                for p, r in enumerate(rs):
                    a(f"v_pk_mul_f32 v[{t+2*p}:{t+2*p+1}], v[{t+2*p}:{t+2*p+1}], v[{r}:{r+1}]")
                for q in range(8):
                    a(f"v_exp_f32 v{t+q}, v{t+q}")
                for p, r in enumerate(rs):
                    a(f"v_pk_add_f32 v[{t+2*p}:{t+2*p+1}], v[{t+2*p}:{t+2*p+1}], 1.0 op_sel_hi:[1,0]")
                for q in range(8):
                    a(f"v_rcp_f32 v{t+q}, v{t+q}")
                for p, r in enumerate(rs):
                    a(f"v_pk_mul_f32 v[{t+2*p}:{t+2*p+1}], v[{t+2*p}:{t+2*p+1}], v[{r}:{r+1}]")
                for p, r in enumerate(rs):
                    a(f"v_cvt_pk_bf16_f32 v{o+p}, v{t+2*p}, v{t+2*p+1}")
    stamp(a, 4)
    a(f"""
    s_and_b32 s{S_T+1}, s{S_WAVE}, 1
    s_lshl_b32 s{S_T}, s{S_P1}, 19
    s_lshl_b32 s{S_T+4}, s{S_T+1}, 18
    s_add_u32 s{S_T}, s{S_T}, s{S_T+4}
    s_add_u32 s{S_T}, s{S_T}, {WS_Z1}
    s_cmp_lt_u32 s{S_P1}, 7
    s_cbranch_scc1 BC_ZST
    s_add_u32 s{S_T}, s{S_T}, {WS_Z2N - WS_Z1 - 7*8*PL}
    """)
    for q in range(8):
        a(f"v_mov_b32 v{t+q}, 0")
    for j in range(2):
        for p in range(8):
            for i in range(2):
                o = PK + (j * 2 + i) * 8 + p
                S = t + 4 * i + 2 * (p & 1)
                a(f"v_dot2c_f32_bf16 v{S}, s{S_ONE}, v{o}")
                a(f"v_dot2c_f32_bf16 v{S+1}, v{o}, v{o}")
    a(f"""
    v_lshl_add_u32 v{U+8}, s{S_T+1}, 1, v{U+8}
    v_lshlrev_b32 v{U+8}, 10, v{U+8}
    v_lshl_add_u32 v{U+8}, v{U+6}, 3, v{U+8}
    v_add_u32 v{U+8}, {LDS_LNS}, v{U+8}
    v_pk_add_f32 v[{t}:{t+1}], v[{t}:{t+1}], v[{t+2}:{t+3}]
    v_pk_add_f32 v[{t+4}:{t+5}], v[{t+4}:{t+5}], v[{t+6}:{t+7}]
    ds_write_b64 v{U+8}, v[{t}:{t+1}]
    ds_write_b64 v{U+8}, v[{t+4}:{t+5}] offset:256
    v_lshlrev_b32 v{U+9}, 3, v{U+6}
    v_add_u32 v{U+9}, {LDS_LNQ}, v{U+9}
    s_waitcnt lgkmcnt(0)
    s_barrier
    """)
    for k in range(32):
        r = g.acc + 2 * k
        a(f"v_lshlrev_b32 v{r}, 16, v{PK+k}")
        a(f"v_and_b32 v{r+1}, 0xffff0000, v{PK+k}")
    a("s_barrier")
    stamp(a, 5)
    LQ = 80
    for i in range(2):
        for k in range(7):
            a(f"ds_read_b64 v[{LQ+14*i+2*k}:{LQ+14*i+2*k+1}], v{U+9} offset:{1024*k + 256*i}")
    a("s_waitcnt lgkmcnt(0)")
    ls = []
    for i in range(2):
        b = LQ + 14 * i
        M, R = 4 + 4 * i, 6 + 4 * i
        l = [f"v_pk_add_f32 v[{b+4*k}:{b+4*k+1}], v[{b+4*k}:{b+4*k+1}], v[{b+4*k+2}:{b+4*k+3}]" for k in range(3)]
        l += [f"v_pk_add_f32 v[{b}:{b+1}], v[{b}:{b+1}], v[{b+4}:{b+5}]",
              f"v_pk_add_f32 v[{b+8}:{b+9}], v[{b+8}:{b+9}], v[{b+12}:{b+13}]",
              f"v_pk_add_f32 v[{b}:{b+1}], v[{b}:{b+1}], v[{b+8}:{b+9}]",
              f"v_mul_f32 v{M}, {f32(1.0/896)}, v{b}",
              f"v_mul_f32 v{R}, {f32(1.0/896)}, v{b+1}",
              f"v_fma_f32 v{R}, -v{M}, v{M}, v{R}",
              f"v_max_f32 v{R}, 0, v{R}"] + bf16r_l(R, R) + [f"v_add_f32 v{R}, {f32(1e-5)}, v{R}"] + bf16r_l(R, R) + \
             [f"v_sqrt_f32 v{R}, v{R}"] + bf16r_l(R, R) + [f"v_rcp_f32 v{R}, v{R}"] + bf16r_l(M, M) + \
             [f"v_mov_b32 v{M+1}, v{M}", f"v_mov_b32 v{R+1}, v{R}"]
        ls.append(l)
    interleave(a, ls)
    for j in range(2):
        for i in range(2):
            M, R = 4 + 4 * i, 6 + 4 * i
            for hf in range(2):
                pr = [(g.acc + (j * 2 + i) * 16 + 2 * p, PK + (j * 2 + i) * 8 + p) for p in range(4 * hf, 4 * hf + 4)]
                interleave(a, [[f"v_pk_add_f32 v[{r}:{r+1}], v[{r}:{r+1}], v[{M}:{M+1}] neg_lo:[0,1] neg_hi:[0,1]",
                                f"v_cvt_pk_bf16_f32 v{o}, v{r}, v{r+1}",
                                f"v_lshlrev_b32 v{r}, 16, v{o}",
                                f"v_and_b32 v{r+1}, 0xffff0000, v{o}",
                                f"v_pk_mul_f32 v[{r}:{r+1}], v[{r}:{r+1}], v[{R}:{R+1}]",
                                f"v_cvt_pk_bf16_f32 v{o}, v{r}, v{r+1}"] for r, o in pr])
    a("BC_ZST:")
    for j in range(2):
        for hf in range(2):
            for i in range(2):
                o = PK + (j * 2 + i) * 8 + hf * 4
                a(f"buffer_store_dwordx4 v[{o}:{o+3}], v{U+7}, s[{R_WS}:{R_WS+3}], s{S_T} offen offset:{i*1024} sc1")
            a(f"s_add_u32 s{S_T}, s{S_T}, {PL}")
    gs.c_setup()
    gs.zero_acc()
    srd(a, R_M, S_BSP, S_BSP + 1, 4096)
    Z1 = 96
    a(f"""
    v_lshlrev_b32 v{T}, 1, v{VR+1}
    buffer_load_ushort v{T+1}, v{T}, s[{R_M}:{R_M+3}], 0 offen
    s_and_b32 s{S_T+1}, s{S_WAVE}, 1
    s_lshl_b32 s{S_T+4}, s{S_P3}, 19
    s_lshl_b32 s{S_T+1}, s{S_T+1}, 18
    s_add_u32 s{S_T+4}, s{S_T+4}, s{S_T+1}
    s_add_u32 s{S_T+5}, s{S_T+4}, {WS_Z1}
    s_add_u32 s{S_T+4}, s{S_T+4}, {WS_H}
    s_waitcnt vmcnt(0)
    s_barrier
    """)
    stamp(a, 6)
    a("s_barrier")
    stamp(a, 7)
    def z1load():
        for k in range(4):
            a(f"buffer_load_dwordx4 v[{Z1+4*k}:{Z1+4*k+3}], v{VR}, s[{R_WS}:{R_WS+3}], s{S_T+5} offen")
            a(f"s_add_u32 s{S_T+5}, s{S_T+5}, {PL}")
    gs.c_run(per=4, after_first=z1load)
    stamp(a, 8)
    a("s_waitcnt vmcnt(0)")
    a(f"v_lshlrev_b32 v{T+2}, 16, v{T+1}")
    a(f"v_mov_b32 v{T+3}, v{T+2}")
    for k in range(4):
        ls = []
        for p in range(4):
            r = gs.acc + 8 * k + 2 * p
            z = Z1 + 4 * k + p
            F, G_ = T + 4 + p, T + 8 + 2 * p
            ls.append([f"v_cvt_pk_bf16_f32 v{F}, v{r}, v{r+1}",
                       f"v_lshlrev_b32 v{r}, 16, v{F}",
                       f"v_and_b32 v{r+1}, 0xffff0000, v{F}",
                       f"v_pk_add_f32 v[{r}:{r+1}], v[{r}:{r+1}], v[{T+2}:{T+3}]",
                       f"v_cvt_pk_bf16_f32 v{F}, v{r}, v{r+1}",
                       f"v_lshlrev_b32 v{r}, 16, v{F}",
                       f"v_and_b32 v{r+1}, 0xffff0000, v{F}",
                       f"v_lshlrev_b32 v{G_}, 16, v{z}",
                       f"v_and_b32 v{G_+1}, 0xffff0000, v{z}",
                       f"v_pk_mul_f32 v[{r}:{r+1}], v[{r}:{r+1}], v[{G_}:{G_+1}]",
                       f"v_cvt_pk_bf16_f32 v{z}, v{r}, v{r+1}"])
        interleave(a, ls)
        a(f"buffer_store_dwordx4 v[{Z1+4*k}:{Z1+4*k+3}], v{VR}, s[{R_WS}:{R_WS+3}], s{S_T+4} offen sc1")
        a(f"s_add_u32 s{S_T+4}, s{S_T+4}, {PL}")
    a("s_waitcnt vmcnt(0) lgkmcnt(0)")
    a("s_barrier")
    a("BC_H:")
    stamp(a, 9)
    gh.c_setup()
    gh.zero_acc()
    X, BR = 96, 104
    srd(a, R_M, S_X, S_X + 1, 2048 * 1024)
    a(f"""
    s_and_b32 s{S_T+1}, s{S_WAVE}, 1
    s_lshl_b32 s{S_T+1}, s{S_T+1}, 6
    s_lshl_b32 s{S_T+4}, s{S_P3}, 7
    s_add_u32 s{S_T+4}, s{S_T+4}, s{S_T+1}
    buffer_load_dwordx4 v[{X}:{X+3}], v{VR+2}, s[{R_M}:{R_M+3}], s{S_T+4} offen
    buffer_load_dwordx4 v[{X+4}:{X+7}], v{VR+2}, s[{R_M}:{R_M+3}], s{S_T+4} offen offset:32
    s_barrier
    """)
    gh.c_run(per=6)
    stamp(a, 10)
    for p in range(8):
        a(f"v_cvt_pk_bf16_f32 v{BR+p}, v{gh.acc+2*p}, v{gh.acc+2*p+1}")
    a("s_waitcnt lgkmcnt(0)")
    gf.c_setup()
    gf.zero_acc()
    srd(a, R_M, S_OUT, S_OUT + 1, 2048 * 1024)
    a("s_barrier")
    gf.c_run(per=6)
    stamp(a, 11)
    a("s_waitcnt vmcnt(0)")
    for hf in range(2):
        ls = []
        for p in range(4 * hf, 4 * hf + 4):
            r = gf.acc + 2 * p
            F, G_ = T + (p & 3), T + 4 + 2 * (p & 3)
            ls.append([f"v_cvt_pk_bf16_f32 v{F}, v{r}, v{r+1}",
                       f"v_lshlrev_b32 v{r}, 16, v{F}",
                       f"v_and_b32 v{r+1}, 0xffff0000, v{F}",
                       f"v_lshlrev_b32 v{G_}, 16, v{X+p}",
                       f"v_and_b32 v{G_+1}, 0xffff0000, v{X+p}",
                       f"v_pk_add_f32 v[{r}:{r+1}], v[{r}:{r+1}], v[{G_}:{G_+1}]",
                       f"v_cvt_pk_bf16_f32 v{F}, v{r}, v{r+1}",
                       f"v_lshlrev_b32 v{r}, 16, v{F}",
                       f"v_and_b32 v{r+1}, 0xffff0000, v{F}",
                       f"v_lshlrev_b32 v{G_}, 16, v{BR+p}",
                       f"v_and_b32 v{G_+1}, 0xffff0000, v{BR+p}",
                       f"v_pk_add_f32 v[{r}:{r+1}], v[{r}:{r+1}], v[{G_}:{G_+1}]",
                       f"v_cvt_pk_bf16_f32 v{X+p}, v{r}, v{r+1}"])
        interleave(a, ls)
        a(f"buffer_store_dwordx4 v[{X+4*hf}:{X+4*hf+3}], v{VR+2}, s[{R_M}:{R_M+3}], s{S_T+4} offen offset:{32*hf}")
    if STAMP:
        a("s_waitcnt lgkmcnt(0)")
    stamp_flush(a, R_WS, S_WAVE, vbase=32)
    a("s_endpgm")


def gen():
    a = Asm()
    name = "mega_kernel"
    a(kernel_header(name))
    a(f"""
    s_cmp_ge_u32 s2, 512
    s_cbranch_scc1 M_END
    """)
    stamp_init(a)
    stamp(a, 0)
    a(f"""
    s_load_dwordx8 s[4:11], s[0:1], 0
    s_load_dwordx8 s[12:19], s[0:1], 32
    s_load_dwordx4 s[20:23], s[0:1], 64
    s_load_dwordx2 s[24:25], s[0:1], 80
    v_and_b32 v{L}, 63, v0
    v_lshrrev_b32 v2, 6, v0
    v_readfirstlane_b32 s{S_WAVE}, v2
    s_and_b32 s{S_IDX}, s2, 255
    s_sub_u32 s{S_LW}, s{S_WAVE}, 4
    s_cmp_ge_u32 s2, 256
    s_cbranch_scc1 M_B
    """)
    a_params(a)
    a(f"""
    s_cmp_ge_u32 s{S_WAVE}, 4
    s_cbranch_scc0 M_AC
    """)
    a_loader(a)
    a("M_AC:")
    a_compute(a)
    a("M_B:")
    b_params(a)
    a(f"""
    s_cmp_ge_u32 s{S_WAVE}, 4
    s_cbranch_scc0 M_BC
    """)
    b_loader(a)
    a("M_BC:")
    b_compute(a)
    a("M_END:")
    a("s_endpgm")
    return name, a.render(), kernel_desc(name, 128, 128)

HEAD = open("parallel_sum__softmax_full_mha__mixer_gmlp__prompt.s.ref").read().split("; Override launch")[0]
if __name__ == "__main__":
    n, t, d = gen()
    out = HEAD + f"; @launch kernel={n} grid=(512,1,1) block=(512,1,1) lds=81920\n"
    out += '.amdgcn_target "amdgcn-amd-amdhsa--gfx950"\n.text\n' + t + '.section .rodata,"a"\n.p2align 6\n' + d
    path = sys.argv[1] if len(sys.argv) > 1 else "parallel_sum__softmax_full_mha__mixer_gmlp__prompt.s"
    open(path, "w").write(out)
    print("wrote", path, len(out))
```

```python
import re

TRANS = ("v_exp_f32", "v_log_f32", "v_rcp_f32", "v_rsq_f32", "v_sqrt_f32", "v_sin_f32", "v_cos_f32",
         "v_exp_f16", "v_rcp_f16", "v_rcp_iflag_f32")

_reg_re = re.compile(r"^(-?)(?:abs\()?([vas])(\d+)\)?$")
_rng_re = re.compile(r"^(-?)(?:abs\()?([vas])\[(\d+):(\d+)\]\)?$")


def regs_of(op):
    op = op.strip()
    m = _reg_re.match(op)
    if m:
        return [(m.group(2), int(m.group(3)))]
    m = _rng_re.match(op)
    if m:
        return [(m.group(2), i) for i in range(int(m.group(3)), int(m.group(4)) + 1)]
    if op == "vcc":
        return [("s", 106), ("s", 107)]
    if op in ("vcc_lo",):
        return [("s", 106)]
    if op in ("vcc_hi",):
        return [("s", 107)]
    if op == "m0":
        return [("m", 0)]
    if op == "exec":
        return [("e", 0)]
    return []


def split_ops(s):
    out, depth, cur = [], 0, ""
    for ch in s:
        if ch in "[(":
            depth += 1
        if ch in "])":
            depth -= 1
        if ch == "," and depth == 0:
            out.append(cur.strip()); cur = ""
        else:
            cur += ch
    if cur.strip():
        out.append(cur.strip())
    return out


class Ins:
    __slots__ = ("text", "mn", "kind", "rd", "wr", "ws", "passes", "srcc", "srcab", "dst", "wide", "dpp", "label")

    def __init__(self, text):
        self.text = text
        t = text.split(";")[0].strip()
        self.label = t.endswith(":")
        self.rd, self.wr = [], []
        self.kind = "other"
        self.ws = 1
        self.passes = 0
        self.srcc = []
        self.srcab = []
        self.dst = []
        self.wide = False
        self.dpp = False
        if self.label or not t or t.startswith("."):
            self.mn = ""
            self.ws = 0
            self.kind = "label" if self.label else "dir"
            return
        parts = t.split(None, 1)
        mn = parts[0]
        for suf in ("_e32", "_e64", "_dpp", "_sdwa"):
            if mn.endswith(suf):
                if suf == "_dpp":
                    self.dpp = True
                mn = mn[: -len(suf)]
        self.mn = mn
        rest = parts[1] if len(parts) > 1 else ""
        ops = split_ops(rest)
        mods = ""
        if ops:
            sp = ops[-1].split(None, 1)
            if len(sp) > 1 and not ops[-1].startswith("abs("):
                ops[-1] = sp[0]; mods = sp[1]
        if "row_" in mods or "quad_perm" in mods or "wave_" in mods:
            self.dpp = True
        R = [regs_of(o) for o in ops]
        if mn == "s_nop":
            self.ws = int(ops[0], 0) + 1
            self.kind = "salu"
        elif mn.startswith("v_mfma"):
            self.kind = "mfma"
            self.passes = 8 if "32x32x16" in mn or "32x32x8" in mn else 4
            self.dst = R[0]; self.srcab = R[1] + R[2]; self.srcc = R[3]
            self.wr = R[0]; self.rd = R[1] + R[2] + R[3]
        elif mn.startswith("v_"):
            self.kind = "trans" if mn in TRANS else "valu"
            if mn.startswith("v_permlane") and "swap" in mn:
                self.wr = R[0] + R[1]; self.rd = R[0] + R[1]
            elif mn.startswith("v_cmp"):
                self.wr = R[0]; self.rd = sum(R[1:], [])
            elif mn in ("v_add_co_u32", "v_sub_co_u32", "v_addc_co_u32", "v_subb_co_u32", "v_mad_u64_u32"):
                self.wr = R[0] + R[1]; self.rd = sum(R[2:], [])
            else:
                self.wr = R[0]; self.rd = sum(R[1:], [])
                if mn in ("v_fmac_f32", "v_dot2c_f32_bf16", "v_pk_fmac_f16", "v_writelane_b32") or self.dpp:
                    self.rd += R[0]
                if mn == "v_cndmask_b32" and len(ops) == 3:
                    self.rd += regs_of("vcc")
        elif mn.startswith("ds_read") or mn.startswith("ds_bpermute") or mn.startswith("ds_swizzle") or mn.startswith("ds_permute"):
            self.kind = "lds"
            self.wr = R[0]; self.rd = sum(R[1:], [])
        elif mn.startswith("ds_"):
            self.kind = "lds"
            self.rd = sum(R, [])
        elif mn.startswith("buffer_load") or mn.startswith("global_load"):
            self.kind = "vmem"
            if " lds" in (" " + mods) or "_lds_" in mn:
                self.rd = sum(R, []) + [("m", 0)]
                self.kind = "vmem_lds"
            else:
                self.wr = R[0]; self.rd = sum(R[1:], [])
        elif mn.startswith("buffer_store") or mn.startswith("global_store"):
            self.kind = "vmem"
            self.rd = sum(R, [])
            self.wide = mn.endswith("x4") or mn.endswith("x3")
            self.dst = R[0] if mn.startswith("buffer") else R[1]
        elif mn.startswith("buffer_atomic") or mn.startswith("global_atomic"):
            self.kind = "vmem"
            self.rd = sum(R, [])
            if "sc0" in mods:
                self.wr = R[0]
        elif mn.startswith("buffer_"):
            self.kind = "vmem"
        elif mn.startswith("s_"):
            self.kind = "salu"
            if mn.startswith("s_cmp") or mn.startswith("s_cbranch") or mn in ("s_branch", "s_barrier", "s_waitcnt", "s_endpgm", "s_setprio", "s_sleep"):
                self.rd = sum(R, [])
            elif R:
                self.wr = R[0]; self.rd = sum(R[1:], [])
                if "saveexec" in mn:
                    self.wr += [("e", 0)]


class HazState:
    def __init__(self):
        self.t = 0
        self.valu_w = {}
        self.trans_w = {}
        self.mfma_w = {}
        self.mfma_c = {}
        self.m0_w = -100
        self.wide_st = {}

    def copy(self):
        h = HazState()
        h.t = self.t
        for k in ("valu_w", "trans_w", "mfma_w", "mfma_c", "wide_st"):
            setattr(h, k, dict(getattr(self, k)))
        h.m0_w = self.m0_w
        return h

    def need(self, ins):
        t = self.t
        n = 0
        def req(t0, ws):
            nonlocal n
            gap = t - t0
            if ws - gap > n:
                n = ws - gap
        k = ins.kind
        vec = k in ("valu", "trans")
        if k == "mfma":
            for r in ins.rd:
                if r in self.valu_w and r[0] in "va":
                    req(self.valu_w[r], 2)
            for r in ins.srcab:
                if r in self.mfma_w:
                    t0, p, _ = self.mfma_w[r]; req(t0, 12 if p == 8 else 8)
            for r in ins.srcc:
                if r in self.mfma_w:
                    t0, p, d = self.mfma_w[r]
                    if tuple(d) == tuple(ins.srcc) and p == ins.passes:
                        pass
                    else:
                        req(t0, 10 if p == 8 else 6)
            for r in ins.dst:
                if r in self.mfma_w and r not in ins.srcc:
                    t0, p, d = self.mfma_w[r]; req(t0, 10 if p == 8 else 6)
        elif k in ("valu", "trans", "lds", "vmem", "vmem_lds"):
            for r in ins.rd + ins.wr:
                if r in self.mfma_w:
                    t0, p, _ = self.mfma_w[r]; req(t0, 12 if p == 8 else 8)
            if vec:
                for r in ins.wr:
                    if r in self.mfma_c:
                        t0, p = self.mfma_c[r]; req(t0, 7 if p == 8 else 3)
                    if r in self.wide_st:
                        req(self.wide_st[r], 2)
                if k == "valu":
                    for r in ins.rd:
                        if r in self.trans_w:
                            req(self.trans_w[r], 1)
                for r in ins.rd:
                    if r[0] == "s" and r in self.valu_w:
                        req(self.valu_w[r], 4 if ins.mn in ("v_readlane_b32", "v_writelane_b32") else 2)
                    if r[0] in "va" and r in self.valu_w:
                        if ins.mn in ("v_readlane_b32", "v_readfirstlane_b32"):
                            req(self.valu_w[r], 1)
                        if ins.mn.startswith("v_permlane") or ins.dpp:
                            req(self.valu_w[r], 2)
            else:
                for r in ins.wr:
                    if r in self.wide_st:
                        req(self.wide_st[r], 1)
                if k.startswith("vmem"):
                    for r in ins.rd:
                        if r[0] == "s" and r in self.valu_w:
                            req(self.valu_w[r], 5)
                for r in ins.rd:
                    if r in self.trans_w:
                        req(self.trans_w[r], 1)
            if k == "vmem_lds":
                req(self.m0_w, 1)
        elif k == "salu":
            for r in ins.rd:
                if r[0] == "s" and r in self.valu_w:
                    req(self.valu_w[r], 2)
        return n

    def step(self, ins):
        self.t += ins.ws
        t = self.t
        k = ins.kind
        if k in ("valu", "trans"):
            for r in ins.wr:
                self.valu_w[r] = t
                self.mfma_w.pop(r, None)
                if k == "trans":
                    self.trans_w[r] = t
                else:
                    self.trans_w.pop(r, None)
        elif k == "mfma":
            for r in ins.dst:
                self.mfma_w[r] = (t, ins.passes, ins.dst)
                self.valu_w.pop(r, None); self.trans_w.pop(r, None)
            for r in ins.srcc:
                self.mfma_c[r] = (t, ins.passes)
        else:
            for r in ins.wr:
                self.valu_w.pop(r, None); self.trans_w.pop(r, None)
                if r == ("m", 0):
                    self.m0_w = t
            if ins.wide:
                for r in ins.dst:
                    self.wide_st[r] = t


def expand_pk(ln):
    m = re.match(r"^v_pk_(add|mul|fma)_f32 (.*)$", ln)
    if not m:
        return [ln]
    op, rest = m.group(1), m.group(2)
    neg = "neg_lo:[0,1]" in rest
    rest = re.sub(r"\s+(neg_lo|neg_hi|op_sel_hi):\[[01,]+\]", "", rest)
    ops = split_ops(rest)
    out = []
    for h in range(2):
        o = []
        for x in ops:
            mm = _rng_re.match(x)
            o.append(f"{mm.group(2)}{int(mm.group(3)) + h}" if mm else x)
        name = "sub" if neg else op
        if op != "fma" and not neg and not o[2].startswith("v"):
            o[1], o[2] = o[2], o[1]
        out.append(f"v_{name}_f32 " + ", ".join(o))
    return out


class Asm:
    def __init__(self):
        self.lines = []
        self.nlabel = 0

    def __call__(self, text):
        for ln in text.strip("\n").split("\n"):
            ln = ln.strip()
            if ln:
                for x in expand_pk(ln):
                    self.lines.append(Ins(x))

    def label(self, base="L"):
        self.nlabel += 1
        return f"{base}_{self.nlabel}"

    def render(self):
        lines = self.lines
        pad = [0] * len(lines)
        labels = {l.text.split(":")[0].strip(): i for i, l in enumerate(lines) if l.label}
        def scan(start, st, maxlen):
            changed = False
            t_end = st.t + maxlen if maxlen else None
            i = start
            while i < len(lines):
                ins = lines[i]
                if pad[i]:
                    st.t += pad[i]
                n = st.need(ins)
                if n > 0:
                    pad[i] += n; st.t += n; changed = True
                st.step(ins)
                if ins.mn.startswith("s_cbranch") or ins.mn == "s_branch":
                    tgt = ins.text.split(";")[0].split()[-1]
                    branches.append((labels[tgt], st.copy())) if maxlen == 0 else None
                    if maxlen and tgt in labels:
                        rem = t_end - st.t
                        if rem > 0:
                            changed |= scan(labels[tgt], st.copy(), rem)
                    if ins.mn == "s_branch":
                        if maxlen:
                            return changed
                        st = HazState()
                if ins.mn == "s_endpgm":
                    if maxlen:
                        return changed
                    st = HazState()
                if t_end is not None and st.t >= t_end:
                    return changed
                i += 1
            return changed
        for _ in range(10):
            branches = []
            ch = scan(0, HazState(), 0)
            for tgt, st in branches:
                ch |= scan(tgt, st, 24)
            if not ch:
                break
        out = []
        for i, ins in enumerate(lines):
            n = pad[i]
            while n > 0:
                k = min(n, 16)
                out.append(f"    s_nop {k-1}")
                n -= k
            if ins.label or ins.kind == "dir":
                out.append(ins.text)
            else:
                out.append("    " + ins.text)
        return "\n".join(out) + "\n"
```

```python
from common import *

def lcm(x, y):
    return x * y // math.gcd(x, y)

V_LANE, V_AOFF, V_BOFF = 1, 2, 3
V_ROW, V_CHA, V_CHB = 2, 3, 4
LDS_MAX = 81920

def compute_lane_setup(a, t):
    L = V_LANE
    a(f"""
    v_and_b32 v{t}, 31, v{L}
    v_lshrrev_b32 v{t+1}, 5, v{L}
    v_bfe_u32 v{t+2}, v{t}, 1, 3
    v_xor_b32 v{t+2}, v{t+2}, v{t+1}
    v_lshlrev_b32 v{t+2}, 4, v{t+2}
    v_lshl_add_u32 v{V_AOFF}, v{t}, 7, v{t+2}
    v_bfe_u32 v{t+2}, v{L}, 2, 2
    v_lshl_add_u32 v{t+3}, v{t+1}, 3, v{t+2}
    v_lshlrev_b32 v{t+3}, 7, v{t+3}
    v_bfe_u32 v{t+4}, v{L}, 3, 1
    v_lshl_add_u32 v{t+3}, v{t+4}, 6, v{t+3}
    v_bfe_u32 v{t+4}, v{L}, 4, 1
    v_lshl_add_u32 v{t+3}, v{t+4}, 5, v{t+3}
    v_and_b32 v{t+4}, 1, v{L}
    v_lshl_add_u32 v{t+3}, v{t+4}, 4, v{t+3}
    v_bfe_u32 v{t+4}, v{L}, 1, 1
    v_lshl_add_u32 v{V_BOFF}, v{t+4}, 3, v{t+3}
    """)

def loader_lane_setup(a, t):
    L = V_LANE
    a(f"""
    v_lshrrev_b32 v{V_ROW}, 3, v{L}
    v_lshrrev_b32 v{t}, 4, v{L}
    v_and_b32 v{t+1}, 7, v{L}
    v_xor_b32 v{V_CHA}, v{t}, v{t+1}
    v_bfe_u32 v{t}, v{L}, 2, 1
    v_bfe_u32 v{t+1}, v{L}, 4, 1
    v_xor_b32 v{t}, v{t}, v{t+1}
    v_and_b32 v{t+1}, 3, v{L}
    v_lshl_add_u32 v{V_CHB}, v{t}, 2, v{t+1}
    """)

PLS = 1152
S_KA0, S_KA1, S_KB0, S_KB1, S_ROT, S_RT = 98, 99, 100, 101, 63, 53

class G2:
    def __init__(self, a, name, BM, NT, mt, nt, NA, NBB, ND, lds_a, lds_b, acc, fr, va, vb, s_wave, s_tmp, s_it, s_lw, s_ma, s_mb, G=2, st=None, s_one=None, ablk=False, bblk=False, SS=False):
        self.__dict__.update(locals())
        self.AB = BM * 128
        self.BB = 2 * NT * PLS if bblk else (NT // 2) * 4096
        self.qa = BM // 32
        self.qb = NT // 2
        self.FS = 4 * G * (mt + nt)
        self.period = lcm(NA, NBB // 2) if SS else lcm(2 * NA, NBB)
        assert lds_a + NA * self.AB <= LDS_MAX and lds_b + NBB * self.BB <= LDS_MAX

    def c_setup(self):
        a, st = self.a, self.s_tmp
        a(f"s_lshr_b32 s{st}, s{self.s_wave}, 1")
        if self.st:
            a(f"s_xor_b32 s{st+2}, s{st}, s{self.s_wave}")
            a(f"s_and_b32 s{st+2}, s{st+2}, 1")
            a(f"s_lshl_b32 s{st+3}, s{st+2}, 5")
            a(f"s_lshl_b32 s{st+2}, s{st+2}, 11")
        L = V_LANE
        a(f"s_mul_i32 s{st}, s{st}, {self.mt*(1024 if self.ablk else 4096)}")
        if self.lds_a:
            a(f"s_add_u32 s{st}, s{st}, {self.lds_a}")
        if self.ablk:
            va = self.va
            a(f"""
            v_lshrrev_b32 v{va+1}, 5, v{L}
            v_bfe_u32 v{va+2}, v{L}, 3, 1
            v_xor_b32 v{va+1}, v{va+1}, v{va+2}
            v_and_b32 v{va}, 31, v{L}
            v_lshlrev_b32 v{va}, 5, v{va}
            v_lshl_add_u32 v{va}, v{va+1}, 4, v{va}
            v_add_u32 v{va}, s{st}, v{va}
            """)
        else:
            a(f"v_add_u32 v{self.va}, s{st}, v{V_AOFF}")
            if self.st:
                a(f"v_xor_b32 v{self.va}, s{st+3}, v{self.va}")
            for ks in range(1, 4):
                a(f"v_xor_b32 v{self.va+ks}, {ks*32}, v{self.va}")
        if self.bblk:
            vb = self.vb
            a(f"""
            s_and_b32 s{st}, s{self.s_wave}, 1
            s_mul_i32 s{st}, s{st}, {self.nt*2*PLS}
            s_add_u32 s{st}, s{st}, {self.lds_b}
            v_lshrrev_b32 v{vb}, 7, v{V_BOFF}
            v_lshlrev_b32 v{vb}, 5, v{vb}
            v_and_b32 v{vb+1}, 31, v{V_BOFF}
            v_add3_u32 v{vb}, v{vb}, v{vb+1}, s{st}
            v_bfe_u32 v{vb+1}, v{L}, 4, 1
            v_mul_u32_u24 v{vb+1}, {PLS}, v{vb+1}
            v_add_u32 v{vb}, v{vb}, v{vb+1}
            """)
        for j in range(0 if self.bblk else self.nt):
            a(f"s_and_b32 s{st}, s{self.s_wave}, 1")
            a(f"s_mul_i32 s{st}, s{st}, {self.nt}")
            if j:
                a(f"s_add_u32 s{st}, s{st}, {j}")
            a(f"s_and_b32 s{st+1}, s{st}, 1")
            a(f"s_lshl_b32 s{st+1}, s{st+1}, 6")
            a(f"s_lshr_b32 s{st}, s{st}, 1")
            a(f"s_lshl_b32 s{st}, s{st}, 12")
            a(f"s_add_u32 s{st}, s{st}, {self.lds_b}")
            if self.st:
                a(f"s_add_u32 s{st}, s{st}, s{st+2}")
            a(f"v_xor_b32 v{self.vb+j}, s{st+1}, v{V_BOFF}")
            a(f"v_add_u32 v{self.vb+j}, s{st}, v{self.vb+j}")
            if self.st:
                a(f"v_xor_b32 v{self.st['vb1']+j}, 2048, v{self.vb+j}")
        if self.st:
            for r in self.st["rows"]:
                a(f"v_mov_b32 v{r}, 0")
                a(f"v_mov_b32 v{r+1}, 0")
            for r in range(self.st["cols"], self.st["cols"] + 4 * self.nt):
                a(f"v_mov_b32 v{r}, 0")
            sel = self.st["sel"]
            a(f"""
            v_bfe_u32 v{sel}, v{L}, 4, 1
            v_xor_b32 v{sel}, v{sel}, v{L}
            v_and_b32 v{sel}, 1, v{sel}
            v_add_u32 v{sel}, -1, v{sel}
            v_and_b32 v{sel}, 0x3f803f80, v{sel}
            v_mov_b32 v{sel+1}, v{sel}
            v_mov_b32 v{sel+2}, v{sel}
            v_mov_b32 v{sel+3}, v{sel}
            """)

    def st_mfma(self, d, ksl):
        if not self.st:
            return []
        fa, fb = self._regs(d, ksl)
        sel = self.st["sel"]
        return [f"v_mfma_f32_16x16x32_bf16 v[{self.st['cols']+4*j}:{self.st['cols']+4*j+3}], v[{fb+4*j}:{fb+4*j+3}], v[{sel}:{sel+3}], v[{self.st['cols']+4*j}:{self.st['cols']+4*j+3}]"
                for j in range(self.nt) if (j & 1) == ksl]

    def st_valu(self, d, ksl):
        if not self.st:
            return []
        fa, fb = self._regs(d, ksl)
        t0, t1 = self.st["tmp"]
        out = []
        for i in range(self.mt):
            if ((i + 1) & 1) == ksl:
                r = self.st["rows"][i]
                for q in range(4):
                    x = fa + 4 * i + q
                    out += [f"v_lshlrev_b32 v{t0}, 16, v{x}", f"v_and_b32 v{t1}, 0xffff0000, v{x}",
                            f"v_add_f32 v{r}, v{r}, v{t0}", f"v_fmac_f32 v{r+1}, v{t0}, v{t0}",
                            f"v_add_f32 v{r}, v{r}, v{t1}", f"v_fmac_f32 v{r+1}, v{t1}, v{t1}"]
        return out

    def _regs(self, d, ksl):
        if self.G == 2:
            base = self.fr + (d & 1) * self.FS
            return base + ksl * self.mt * 4, base + 8 * self.mt + ksl * self.nt * 4
        base = self.fr + ksl * self.FS
        return base, base + 4 * self.mt

    def reads(self, d, ksl):
        sa, sb = (d >> 1) % self.NA, d % self.NBB
        fa, fb = self._regs(d, ksl)
        ra = [f"ds_read_b128 v[{fa+4*i}:{fa+4*i+3}], v{self.va + 2*(d&1) + ksl} offset:{sa*self.AB + i*4096}" for i in range(self.mt)]
        if self.ablk:
            ra = [f"ds_read_b128 v[{fa+4*i}:{fa+4*i+3}], v{self.va} offset:{sa*self.AB + (2*(d&1)+ksl)*self.BM*32 + i*1024}" for i in range(self.mt)]
        if self.bblk:
            rb = [f"ds_read_b64_tr_b16 v[{fb+4*j+2*t}:{fb+4*j+2*t+1}], v{self.vb} offset:{sb*self.BB + j*2*PLS + (16*ksl+4*t)*32}"
                  for j in range(self.nt) for t in range(2)]
        elif self.st:
            vb = self.st["vb1"] if ksl else self.vb
            rb = [f"ds_read_b64_tr_b16 v[{fb+4*j+2*t}:{fb+4*j+2*t+1}], v{vb+j} offset:{sb*self.BB + 4*t*128}"
                  for j in range(self.nt) for t in range(2)]
        else:
            rb = [f"ds_read_b64_tr_b16 v[{fb+4*j+2*t}:{fb+4*j+2*t+1}], v{self.vb+j} offset:{sb*self.BB + (16*ksl+4*t)*128}"
                  for j in range(self.nt) for t in range(2)]
        return [ra[0]] + rb[:2] + ra[1:] + rb[2:]

    def mfmas(self, d, ksl):
        fa, fb = self._regs(d, ksl)
        out = []
        for j in range(self.nt):
            for i in range(self.mt):
                dd = self.acc + (j * self.mt + i) * 16
                out.append(f"v_mfma_f32_32x32x16_bf16 v[{dd}:{dd+15}], v[{fb+4*j}:{fb+4*j+3}], v[{fa+4*i}:{fa+4*i+3}], v[{dd}:{dd+15}]")
        return out

    def zero_acc(self):
        for r in range(self.acc, self.acc + self.mt * self.nt * 16):
            self.a(f"v_mov_b32 v{r}, 0")

    def _loop(self, n, step, tag):
        a, P = self.a, self.period
        if n <= 0:
            return
        if n <= P:
            for d in range(n):
                step(d)
            return
        iters = (n + P - 1) // P
        uex = (n - 1) % P
        a(f"s_mov_b32 s{self.s_it}, 0")
        a(f"{self.name}_{tag}_LOOP:")
        for u in range(P):
            step(u)
            if u == uex:
                a(f"s_add_u32 s{self.s_it}, s{self.s_it}, 1")
                a(f"s_cmp_lt_u32 s{self.s_it}, {iters}")
                if u == P - 1:
                    a(f"s_cbranch_scc1 {self.name}_{tag}_LOOP")
                else:
                    a(f"s_cbranch_scc0 {self.name}_{tag}_DONE")
        if uex != P - 1:
            a(f"s_branch {self.name}_{tag}_LOOP")
            a(f"{self.name}_{tag}_DONE:")

    def c_run(self, per=4, after_first=None):
        a = self.a
        a("s_barrier")
        if after_first:
            after_first()
        prof = self.name in os.environ.get("PROF", "").split(",")
        def tick(acc):
            if prof:
                a("s_memtime s[0:1]")
                a("s_waitcnt lgkmcnt(0)")
                if acc is not None:
                    a("s_sub_u32 s11, s0, s11")
                    a(f"s_add_u32 s{acc}, s{acc}, s11")
                a("s_mov_b32 s11, s0")
        if prof:
            a("s_mov_b32 s64, 0\ns_mov_b32 s65, 0\ns_mov_b32 s10, 0")
        tick(None)
        mt, nt = self.mt, self.nt
        def rkeys(d, ksl):
            ka = [("a", d, ksl, i) for i in range(mt)]
            kb = [("b", d, ksl, j) for j in range(nt) for t in range(2)]
            return list(zip([ka[0]] + kb[:2] + ka[1:] + kb[2:], self.reads(d, ksl)))
        def mitems(d, ksl):
            out = [([("a", d, ksl, i), ("b", d, ksl, j)], m) for (j, i), m in
                   zip([(j, i) for j in range(nt) for i in range(mt)], self.mfmas(d, ksl))]
            out += [([("b", d, ksl, j)], m) for j, m in zip([j for j in range(nt) if (j & 1) == ksl], self.st_mfma(d, ksl))]
            return out
        def vitems(d, ksl):
            ii = [i for i in range(mt) if ((i + 1) & 1) == ksl]
            return [([("a", d, ksl, ii[0])], v) for v in self.st_valu(d, ksl)]
        issued, done = [], [-1]
        def R(x):
            issued.append(x[0]); a(x[1])
        def X(x):
            idx = max(max(p for p, k in enumerate(issued) if k == n) for n in x[0])
            if idx > done[0]:
                n = min(len(issued) - 1 - idx, 15)
                a(f"s_waitcnt lgkmcnt({n})")
                done[0] = len(issued) - 1 - n
            a(x[1])
        def BAR():
            if done[0] < len(issued) - 1:
                a("s_waitcnt lgkmcnt(0)")
                done[0] = len(issued) - 1
            tick(64)
            a("s_barrier")
            tick(65)
        def spread(ms, rs, vs, lead=0):
            rs, vs = list(rs), list(vs)
            for _ in range(lead):
                R(rs.pop(0))
            n = len(ms)
            for k, m in enumerate(ms):
                X(m)
                for _ in range(-(-len(rs) // (n - k)) + (1 if k == 0 and not lead and len(rs) % n else 0)):
                    if rs:
                        R(rs.pop(0))
                for _ in range(-(-len(vs) // (n - k))):
                    X(vs.pop(0))
        def start(pre):
            del issued[:]
            issued.extend(k for k, _ in pre)
            done[0] = -1
        if self.G == 2:
            assert self.SS
            rd2 = lambda d: rkeys(d, 0) + rkeys(d, 1)
            mf2 = lambda d: mitems(d, 0) + mitems(d, 1)
            for r in rd2(0):
                R(r)
            def step(u):
                start(rd2(2 * u))
                spread(mf2(2 * u), rd2(2 * u + 1), [])
                ms = mf2(2 * u + 1)
                h = len(ms) // 2
                for m in ms[:h]:
                    X(m)
                BAR()
                spread(ms[h:], rd2(2 * u + 2), [], lead=3)
            self._loop(self.ND // 2, step, "C")
        else:
            for r in rkeys(0, 0):
                R(r)
            def step(d):
                start(rkeys(d, 0))
                spread(mitems(d, 0), rkeys(d, 1), vitems(d, 0))
                ms = mitems(d, 1)
                spread(ms[:2], [], vitems(d, 1))
                BAR()
                spread(ms[2:], rkeys(d + 1, 0), [], lead=3)
            self._loop(self.ND, step, "C")

    def l_setup_a(self, vda, lda, vt):
        a, st, qa = self.a, self.s_tmp, self.qa
        L = V_LANE
        assert (lda is None) == self.ablk
        a(f"s_mul_i32 s{self.s_ma}, s{self.s_lw}, {qa*1024}")
        if lda:
            self.vda = [vda + i for i in range(qa)]
            a(f"s_mul_i32 s{st}, s{self.s_lw}, {8*qa*lda}")
            a(f"s_mov_b32 s{st+1}, {lda}")
            a(f"v_lshlrev_b32 v{vt}, 4, v{V_CHA}")
            a(f"v_mad_u32_u24 v{vt}, v{V_ROW}, s{st+1}, v{vt}")
            a(f"v_add_u32 v{vt}, s{st}, v{vt}")
            a(f"v_xor_b32 v{vt+1}, 64, v{vt}")
            self.ka_step = 128
            assert qa % 2 == 0
            for i in range(qa):
                a(f"v_add_u32 v{vda+i}, {8*i*lda - i*1024}, v{vt + (i & 1)}")
        else:
            self.vda = [vda] * qa
            a(f"""
            s_lshl_b32 s{st}, s{self.s_lw}, 16
            v_bfe_u32 v{vt}, v{L}, 4, 1
            v_xor_b32 v{vt}, v{vt}, v{L}
            v_lshlrev_b32 v{vt}, 4, v{vt}
            v_add_u32 v{vda}, s{st}, v{vt}
            """)
            self.ka_step = 4 * PL

    def l_setup_b(self, vdb, ldb, vt, pstride=128):
        a, st, qb = self.a, self.s_tmp, self.qb
        L = V_LANE
        self.vdb = vdb
        assert (ldb is None) == self.bblk
        if not ldb:
            self.b_imm = PLS
            self.kb_step = 32 * 32
            a(f"s_mul_i32 s{self.s_mb}, s{self.s_lw}, {qb*PLS}")
            a(f"s_mul_i32 s{st}, s{self.s_lw}, {qb*PL}")
            a(f"v_lshlrev_b32 v{vt}, 4, v{L}")
            a(f"v_add_u32 v{vdb}, s{st}, v{vt}")
            for i in range(1, qb):
                a(f"v_add_u32 v{vdb+i}, {i*(PL-PLS)}, v{vdb}")
            return
        a(f"s_mul_i32 s{self.s_mb}, s{self.s_lw}, {qb*1024}")
        a(f"s_mov_b32 s{st+1}, {ldb}")
        a(f"v_lshlrev_b32 v{vt}, 4, v{V_CHB}")
        a(f"v_mad_u32_u24 v{vt}, v{V_ROW}, s{st+1}, v{vt}")
        eb, pb = 8 * ldb, pstride
        self.kb_step = 32 * ldb
        self.b_imm = 0 if qb == 3 else 1024
        for i in range(qb):
            a(f"s_mul_i32 s{st}, s{self.s_lw}, {qb}")
            if i:
                a(f"s_add_u32 s{st}, s{st}, {i}")
            a(f"s_and_b32 s{st+1}, s{st}, 3")
            a(f"s_mul_i32 s{st+1}, s{st+1}, {eb}")
            a(f"s_lshr_b32 s{st}, s{st}, 2")
            a(f"s_mul_i32 s{st}, s{st}, {pb}")
            a(f"s_add_u32 s{st}, s{st}, s{st+1}")
            if i * self.b_imm:
                a(f"s_sub_u32 s{st}, s{st}, {i * self.b_imm}")
            a(f"v_add_u32 v{vdb+i}, s{st}, v{vt}")

    def l_bind(self, srdA, srdB, s_ka, s_kb):
        self.srdA, self.srdB, self.s_ka, self.s_kb = srdA, srdB, s_ka, s_kb

    def l_rot(self, s_rot, win=0):
        a, st = self.a, self.s_tmp
        self.win = win
        if win:
            a(f"""
            s_mov_b32 s{S_KA0}, s{self.s_ka}
            s_mov_b32 s{S_KB0}, s{self.s_kb}
            s_mov_b32 s{S_KA1}, 0
            s_mov_b32 s{S_KB1}, 0
            s_mov_b32 s{S_ROT}, s{s_rot}
            """)
        else:
            a(f"""
            s_mov_b32 s{S_KA0}, s{self.s_ka}
            s_add_u32 s{S_KA1}, s{self.s_ka}, {(self.ND//2)*self.ka_step}
            s_mov_b32 s{S_KB0}, s{self.s_kb}
            s_add_u32 s{S_KB1}, s{self.s_kb}, {self.ND*self.kb_step}
            """)
        a(f"""
        s_mul_i32 s{st+1}, s{s_rot}, {self.ka_step}
        s_add_u32 s{self.s_ka}, s{self.s_ka}, s{st+1}
        s_mul_i32 s{st+1}, s{s_rot}, {2*self.kb_step}
        s_add_u32 s{self.s_kb}, s{self.s_kb}, s{st+1}
        """)

    def _adv(self, k, k0, k1, step, mul):
        a = self.a
        if self.win:
            w = self.win * mul - 1
            a(f"s_add_u32 s{k1}, s{k1}, 1")
            if mul == 2:
                a(f"s_lshl1_add_u32 s{k}, s{S_ROT}, s{k1}")
            else:
                a(f"s_add_u32 s{k}, s{S_ROT}, s{k1}")
            a(f"s_and_b32 s{k}, s{k}, {w}")
            a(f"s_andn2_b32 s{S_RT}, s{k1}, {w}")
            a(f"s_or_b32 s{k}, s{k}, s{S_RT}")
            a(f"s_mul_i32 s{k}, s{k}, {step}")
            a(f"s_add_u32 s{k}, s{k}, s{k0}")
        else:
            a(f"s_add_u32 s{k}, s{k}, {step}")
            a(f"s_cmp_eq_u32 s{k}, s{k1}")
            a(f"s_cselect_b32 s{k}, s{k0}, s{k}")

    def issue_a(self, u):
        a = self.a
        a(f"s_add_u32 m0, s{self.s_ma}, {self.lds_a + (u % self.NA) * self.AB}")
        for i in range(self.qa):
            a(f"buffer_load_dwordx4 v{self.vda[i]}, s[{self.srdA}:{self.srdA+3}], s{self.s_ka} offen offset:{i*1024} lds")
        self._adv(self.s_ka, S_KA0, S_KA1, self.ka_step, 1)

    def issue_b(self, d):
        a = self.a
        for i in range(self.qb):
            if i == 0 or not self.b_imm:
                a(f"s_add_u32 m0, s{self.s_mb}, {self.lds_b + (d % self.NBB) * self.BB + i*1024}")
            a(f"buffer_load_dwordx4 v{self.vdb+i}, s[{self.srdB}:{self.srdB+3}], s{self.s_kb} offen offset:{i*self.b_imm} lds")
        self._adv(self.s_kb, S_KB0, S_KB1, self.kb_step, 2)

    def pro_order(self, which="ab"):
        out = []
        nau, nbu = min(self.NA, self.ND // 2), min(self.NBB, self.ND)
        for d in range(max(2 * nau, nbu)):
            if d % 2 == 0 and d // 2 < nau and "a" in which:
                out.append(("a", d // 2))
            if d < nbu and "b" in which:
                out.append(("b", d))
        return out

    def l_issue(self, lst):
        for k, i in lst:
            (self.issue_a if k == "a" else self.issue_b)(i)

    def l_run(self, order, work=None):
        a, ND = self.a, self.ND
        seq = []
        def add(k, i):
            seq.extend([(k, i)] * (self.qa if k == "a" else self.qb))
        for k, i in order:
            add(k, i)
        NS = ND // 2 if self.SS else ND
        def cnt(d):
            need = [("a", d), ("b", 2 * d), ("b", 2 * d + 1)] if self.SS else [("a", d >> 1), ("b", d)]
            idx = max(max(p for p, t in enumerate(seq) if t == n) for n in need)
            return len(seq) - 1 - idx
        waits = {-1: cnt(0)}
        plan = {}
        for d in range(NS):
            waits[d] = cnt(d + 1) if d + 1 < NS else None
            pl = []
            if self.SS:
                if d + self.NA < NS:
                    pl.append(("a", d + self.NA))
                if 2 * d + self.NBB < ND:
                    pl += [("b", 2 * d + self.NBB), ("b", 2 * d + 1 + self.NBB)]
            else:
                if d % 2 == 1 and (d >> 1) + self.NA < ND // 2:
                    pl.append(("a", (d >> 1) + self.NA))
                if d + self.NBB < ND:
                    pl.append(("b", d + self.NBB))
            plan[d] = pl
            for k, i in pl:
                add(k, i)
        def full(d):
            return len(plan[d]) == (3 if self.SS else 2 if d % 2 else 1)
        nmain = 0
        while nmain < NS and full(nmain):
            nmain += 1
        P = self.period
        wmin = {}
        for d in range(nmain):
            wmin[d % P] = min(wmin.get(d % P, 63), waits[d], 63)
        a(f"s_waitcnt vmcnt({min(waits[-1], 63)})")
        a("s_barrier")
        if work:
            work(-1)
        prof = self.name in os.environ.get("PROF", "").split(",")
        trace = self.name in os.environ.get("TRACE", "").split(",")
        def tick(acc):
            if prof:
                a("s_memtime s[0:1]")
                a("s_waitcnt lgkmcnt(0)")
                if acc is not None:
                    a("s_sub_u32 s11, s0, s11")
                    a(f"s_add_u32 s{acc}, s{acc}, s11")
                a("s_mov_b32 s11, s0")
            if trace:
                a("s_memrealtime s[0:1]")
                a("s_waitcnt lgkmcnt(0)")
                a(f"v_cmp_eq_u32 vcc, s10, v{V_LANE}")
                a("v_mov_b32 v126, s0")
                a("v_cndmask_b32 v127, v127, v126, vcc")
                a("s_add_u32 s10, s10, 1")
        if prof:
            a("s_mov_b32 s64, 0\ns_mov_b32 s65, 0\ns_mov_b32 s10, 0")
        if trace:
            a("s_mov_b32 s10, 0\nv_mov_b32 v127, 0")
        tick(None)
        def step(u):
            a(f"s_waitcnt vmcnt({wmin[u]})")
            tick(64)
            a("s_barrier")
            tick(65)
            self.l_issue(plan[u])
            tick(10)
        self._loop(nmain, step, "L")
        for d in range(nmain, NS):
            if waits[d] is not None:
                a(f"s_waitcnt vmcnt({min(waits[d], 63)})")
            if trace: tick(64)
            a("s_barrier")
            if trace: tick(65)
            self.l_issue(plan[d])
            if trace: tick(10)
        if trace:
            a(f"""
            s_lshl_b32 s0, s2, 3
            s_add_u32 s0, s0, s{self.s_wave}
            s_lshl_b32 s0, s0, 8
            s_add_u32 s0, s0, {WS_STAMP + (1 << 20)}
            v_lshlrev_b32 v126, 2, v{V_LANE}
            buffer_store_dword v127, v126, s[28:31], s0 offen
            """)
```

```python
from common import *
from g2 import *
import sys

TOFF = float(os.environ.get("TOFF", "100"))
LLIM = 2.0 ** 110
S_X, S_WQKV, S_WO, S_WIN, S_WSP, S_BSP, S_WOUT, S_OUT, S_DBG, S_WS = 4, 6, 8, 12, 14, 16, 18, 20, 22, 24
R_WS, R_A, R_B, R_M = 28, 32, 36, 40
S_IDX, S_WAVE, S_P0, S_P1, S_P2, S_P3, S_LW, S_KA, S_KB, S_IT, S_OK, S_T = 3, 44, 45, 46, 47, 48, 49, 50, 51, 52, 53, 54
S_MA, S_MB = 26, 27
L = V_LANE
LDS_V, LDS_K, LDS_ONES, LDS_VOTE = 0, 32768, 65536, 65536 + 8704
LDS_STA = 74752
LDS_STB, LDS_LNS, LDS_LNQ = 65536, 32768, 36864
S_ONE = 63
POLL_MAX = 20000
PF = int(os.environ.get('PF', '0'))
LDS_DUMMY = 79872
ROT = int(os.environ.get('ROT', '1'))
GK = dict(s_wave=S_WAVE, s_tmp=S_T, s_it=S_IT, s_lw=S_LW, s_ma=S_MA, s_mb=S_MB)

def poll(a, lbl, rsrd, voff, soff, expect, vt, inv=True):
    a(f"""
    s_mov_b32 s{S_T+8}, 0
    {lbl}_P:
    buffer_load_dword v{vt}, v{voff}, s[{rsrd}:{rsrd+3}], {soff} offen sc1
    s_waitcnt vmcnt(0)
    v_cmp_ne_u32 vcc, {expect}, v{vt}
    s_add_u32 s{S_T+8}, s{S_T+8}, 1
    s_cmp_gt_u32 s{S_T+8}, {POLL_MAX}
    s_cbranch_scc1 {lbl}_X
    s_cbranch_vccz {lbl}_X
    s_sleep 1
    s_branch {lbl}_P
    {lbl}_X:
    """)
    if inv and os.environ.get('INV', '0') == '1':
        a("buffer_inv sc1")
        a("s_waitcnt vmcnt(0)")

def signal(a, s_cnt, vt):
    a(f"""
    s_lshl_b32 s{S_T+8}, s{s_cnt}, 8
    s_add_u32 s{S_T+8}, s{S_T+8}, {WS_CNT}
    v_mov_b32 v{vt}, 1
    v_mov_b32 v{vt+1}, 0
    s_mov_b64 exec, 1
    buffer_atomic_add v{vt}, v{vt+1}, s[{R_WS}:{R_WS+3}], s{S_T+8} offen sc1
    s_mov_b64 exec, -1
    """)

VZ0, VZF = 6, 7

def z0_issue(a):
    srd(a, R_M, S_DBG, S_DBG + 1, 256)
    a(f"buffer_load_dword v{VZF}, v{VZ0}, s[{R_M}:{R_M+3}], 0 offen sc1")

def z0_check(a, lbl):
    a(f"""
    v_cmp_ne_u32 vcc, 1, v{VZF}
    s_nop 4
    s_cbranch_vccz {lbl}_ZOK
    """)
    poll(a, f"{lbl}_Z", R_M, VZ0, 0, 1, VZF, inv=False)
    a(f"{lbl}_ZOK:")

def interleave(a, lists):
    n = max(len(l) for l in lists)
    for q in range(n):
        for l in lists:
            if q < len(l):
                a(l[q])

def bf16r_l(dst, src):
    return [f"v_cvt_pk_bf16_f32 v{dst}, v{src}, v{src}", f"v_lshlrev_b32 v{dst}, 16, v{dst}"]

def rank1(a, g, lds_st, RD, TA, PR, CO, TC):
    mt, nt = g.mt, g.nt
    FB = g.fr
    FA = g.fr + 4 * mt
    RSZ = g.BM * 32
    rows, cols = g.st["rows"], g.st["cols"]
    a(f"""
    s_lshr_b32 s{S_T}, s{S_WAVE}, 1
    s_and_b32 s{S_T+1}, s{S_WAVE}, 1
    s_mul_i32 s{S_T+2}, s{S_T}, {mt*1024}
    s_add_u32 s{S_T+2}, s{S_T+2}, {lds_st}
    s_lshl_b32 s{S_T+3}, s{S_T+1}, 4
    s_mul_i32 s{S_T+1}, s{S_T+1}, {nt*256}
    s_add_u32 s{S_T+1}, s{S_T+1}, {lds_st + RSZ}
    s_lshl_b32 s{S_T}, s{S_T}, 7
    s_add_u32 s{S_T}, s{S_T}, s{S_T+1}
    v_and_b32 v{TA}, 31, v{L}
    v_lshlrev_b32 v{TA}, 5, v{TA}
    v_add_u32 v{TA}, s{S_T+2}, v{TA}
    v_lshrrev_b32 v{TA+2}, 5, v{L}
    v_lshl_add_u32 v{TA+2}, v{TA+2}, 3, v{TA}
    v_add_u32 v{TA+2}, s{S_T+3}, v{TA+2}
    """)
    for i in range(mt):
        a(f"ds_write_b64 v{TA+2}, v[{rows[i]}:{rows[i]+1}] offset:{i*1024}")
    a(f"""
    v_and_b32 v{TA+1}, 1, v{L}
    v_lshlrev_b32 v{TA+1}, 6, v{TA+1}
    v_and_b32 v{TA+2}, 48, v{L}
    v_add3_u32 v{TA+1}, v{TA+1}, v{TA+2}, s{S_T}
    s_mov_b32 exec_lo, 0x30003
    s_mov_b32 exec_hi, 0x30003
    """)
    for j in range(nt):
        a(f"ds_write_b128 v{TA+1}, v[{cols+4*j}:{cols+4*j+3}] offset:{j*256}")
    a(f"""
    s_mov_b64 exec, -1
    s_waitcnt lgkmcnt(0)
    v_lshlrev_b32 v{TA+1}, 2, v{L}
    v_add_u32 v{TA+1}, s{S_T+1}, v{TA+1}
    s_barrier
    """)
    for i in range(mt):
        a(f"ds_read_b128 v[{PR+8*i}:{PR+8*i+3}], v{TA} offset:{i*1024}")
        a(f"ds_read_b128 v[{PR+8*i+4}:{PR+8*i+7}], v{TA} offset:{i*1024+16}")
    for j in range(nt):
        a(f"ds_read_b32 v{CO+j}, v{TA+1} offset:{j*256}")
    for i in range(mt):
        a(f"v_mov_b32 v{FB+4*i+2}, 0")
        a(f"v_mov_b32 v{FB+4*i+3}, 0")
    for j in range(nt):
        a(f"v_mov_b32 v{FA+4*j+2}, 0")
        a(f"v_mov_b32 v{FA+4*j+3}, 0")
    a("s_waitcnt lgkmcnt(0)")
    l1, l2 = [], []
    for i in range(mt):
        c, b, q = PR + 8 * i, FB + 4 * i, PR + 8 * i + 1
        l1.append([f"v_add_f32 v{c}, v{c}, v{c+2}",
                   f"v_add_f32 v{c+4}, v{c+4}, v{c+6}",
                   f"v_add_f32 v{c}, v{c}, v{c+4}",
                   f"v_mul_f32 v{c}, {f32(1.0/512)}, v{c}",
                   f"v_cvt_pk_bf16_f32 v{b}, -v{c}, -v{c}",
                   f"v_cvt_pk_bf16_f32 v{b+1}, -v{c}, -v{c}"])
        l2.append([f"v_add_f32 v{q}, v{q}, v{q+2}",
                   f"v_add_f32 v{q+4}, v{q+4}, v{q+6}",
                   f"v_add_f32 v{q}, v{q}, v{q+4}",
                   f"v_mul_f32 v{q}, {f32(1.0/512)}, v{q}",
                   f"v_fma_f32 v{q}, -v{c}, v{c}, v{q}",
                   f"v_max_f32 v{q}, 0, v{q}"] + bf16r_l(q, q) + [f"v_add_f32 v{q}, {f32(1e-5)}, v{q}"] + bf16r_l(q, q) +
                  [f"v_sqrt_f32 v{q}, v{q}"] + bf16r_l(q, q) + [f"v_rcp_f32 v{RD+i}, v{q}"])
    for j in range(nt):
        c, d, C = CO + j, FA + 4 * j, TC + 3 * j
        l1.append([f"v_cvt_pk_bf16_f32 v{C}, v{c}, v{c}",
                   f"v_lshlrev_b32 v{C}, 16, v{C}",
                   f"v_sub_f32 v{C+1}, v{c}, v{C}",
                   f"v_cvt_pk_bf16_f32 v{d}, v{C}, v{C+1}",
                   f"v_and_b32 v{C+2}, 0xffff0000, v{d}",
                   f"v_sub_f32 v{C+1}, v{C+1}, v{C+2}",
                   f"v_cvt_pk_bf16_f32 v{d+1}, v{C+1}, 0"])
    interleave(a, l1)
    for j in range(nt):
        for i in range(mt):
            dd = g.acc + (j * mt + i) * 16
            a(f"v_mfma_f32_32x32x16_bf16 v[{dd}:{dd+15}], v[{FA+4*j}:{FA+4*j+3}], v[{FB+4*i}:{FB+4*i+3}], v[{dd}:{dd+15}]")
    interleave(a, l2)

def gA1(a):
    return G2(a, "A1", BM=64, NT=6, mt=1, nt=3, NA=2, NBB=4, ND=16, lds_a=0, lds_b=16384, acc=16, fr=64, va=4, vb=8,
              G=1, st=dict(vb1=11, rows=[112], cols=96, sel=108, tmp=(114, 115)), **GK)

def a_params(a):
    a(f"""
    s_bfe_u32 s{S_P0}, s{S_IDX}, 0x20001
    s_lshl_b32 s{S_P0}, s{S_P0}, 3
    s_bfe_u32 s{S_T}, s{S_IDX}, 0x30003
    s_add_u32 s{S_P0}, s{S_P0}, s{S_T}
    s_and_b32 s{S_P1}, s{S_IDX}, 1
    s_lshl_b32 s{S_P1}, s{S_P1}, 2
    s_lshr_b32 s{S_T}, s{S_IDX}, 6
    s_add_u32 s{S_P1}, s{S_P1}, s{S_T}
    s_and_b32 s{S_P2}, s{S_IDX}, 7
    s_lshl_b32 s{S_P2}, s{S_P2}, 2
    s_bfe_u32 s{S_T}, s{S_IDX}, 0x20003
    s_add_u32 s{S_P2}, s{S_P2}, s{S_T}
    s_lshr_b32 s{S_P3}, s{S_IDX}, 5
    """)

def a_loader(a):
    g = gA1(a)
    a("s_setprio 3")
    loader_lane_setup(a, 60)
    g.l_setup_a(8, 1024, 60)
    g.l_setup_b(12, 3072, 60, pstride=1024)
    g.l_bind(R_A, R_B, S_KA, S_KB)
    a(f"""
    v_mov_b32 v{VZ0}, 0
    s_lshl_b32 s{S_KA}, s{S_P0}, 16
    s_lshl_b32 s{S_KB}, s{S_P1}, 7
    s_add_u32 s{S_T}, s{S_P0}, s{S_P1}
    s_lshl_b32 s{S_T}, s{S_T}, 1
    s_and_b32 s{S_T}, s{S_T}, {7*ROT}
    """)
    g.l_rot(S_T)
    a("s_waitcnt lgkmcnt(0)")
    srd(a, R_A, S_X, S_X + 1, 2048 * 1024)
    srd(a, R_B, S_WQKV, S_WQKV + 1, 512 * 3072)
    order = g.pro_order()
    g.l_issue(order)
    srd(a, R_WS, S_WS, S_WS + 1, WS_END)
    stamp(a, 1)
    g.l_run(order)
    z0_issue(a)
    a("s_barrier")
    stamp(a, 2)
    a(f"""
    v_and_b32 v62, 1, v{L}
    v_lshlrev_b32 v62, 8, v62
    s_lshl_b32 s{S_T+1}, s{S_P1}, 1
    s_and_b32 s{S_T}, s{S_P0}, 1
    s_add_u32 s{S_T}, s{S_T}, s{S_T+1}
    s_and_b32 s{S_T+1}, s{S_IDX}, 7
    s_lshl_b32 s{S_T+1}, s{S_T+1}, 9
    s_add_u32 s{S_T+1}, s{S_T+1}, {WS_CNT + C_S1*256}
    s_waitcnt vmcnt(0)
    s_barrier
    s_cmp_eq_u32 s{S_LW}, 0
    s_cbranch_scc0 AT_START
    """)
    stamp(a, 3)
    z0_check(a, "AL")
    signal(a, S_T, 60)
    poll(a, "AL_S1", R_WS, 62, f"s{S_T+1}", 16, 60)
    a("s_branch AT_START")

def a_compute(a):
    g = gA1(a)
    T = 80
    a("s_setprio 2")
    a(f"""
    v_mov_b32 v{T}, 0x3f803f80
    v_mov_b32 v{T+1}, 0x3f803f80
    v_mov_b32 v{T+2}, 0x3f803f80
    v_mov_b32 v{T+3}, 0x3f803f80
    v_lshlrev_b32 v{T+4}, 4, v0
    v_add_u32 v{T+4}, {LDS_ONES}, v{T+4}
    ds_write_b128 v{T+4}, v[{T}:{T+3}]
    ds_write_b128 v{T+4}, v[{T}:{T+3}] offset:4096
    ds_write_b128 v{T+4}, v[{T}:{T+3}] offset:4608
    """)
    if PF:
        a(f"""
        v_lshlrev_b32 v{T+8}, 10, v{L}
        v_and_b32 v{T+9}, 15, v{L}
        v_mul_u32_u24 v{T+9}, 3072, v{T+9}
        v_lshrrev_b32 v{T+10}, 4, v{L}
        v_min_u32 v{T+10}, 2, v{T+10}
        v_lshl_add_u32 v{T+9}, v{T+10}, 10, v{T+9}
        s_lshl_b32 s{S_T}, s{S_P0}, 16
        s_lshl_b32 s{S_T+1}, s{S_WAVE}, 8
        s_add_u32 s{S_T}, s{S_T}, s{S_T+1}
        s_mul_i32 s{S_T+1}, s{S_P0}, {16*3072}
        s_lshl_b32 s{S_T+2}, s{S_P1}, 7
        s_add_u32 s{S_T+1}, s{S_T+1}, s{S_T+2}
        s_mov_b32 m0, {LDS_DUMMY}
        s_cmp_eq_u32 s{S_WAVE}, 3
        s_waitcnt lgkmcnt(0)
        s_cbranch_scc1 AC_PFW
        """)
        srd(a, R_A, S_X, S_X + 1, 2048 * 1024)
        for o in ([256, 384] if PF == 1 else [256, 320, 384, 448]):
            a(f"buffer_load_dword v{T+8}, s[{R_A}:{R_A+3}], s{S_T} offen offset:{o} lds")
        a("s_branch AC_PFD")
        a("AC_PFW:")
        srd(a, R_A, S_WQKV, S_WQKV + 1, 512 * 3072)
        for o in ([0] if PF == 1 else [0, 64]):
            a(f"buffer_load_dword v{T+9}, s[{R_A}:{R_A+3}], s{S_T+1} offen offset:{o} lds")
        a("AC_PFD:")
    compute_lane_setup(a, T + 8)
    g.c_setup()
    g.zero_acc()
    a("s_waitcnt lgkmcnt(0)")
    srd(a, R_WS, S_WS, S_WS + 1, WS_END)
    a(f"""
    s_or_b32 s{S_OK}, s2, s{S_WAVE}
    s_cmp_eq_u32 s{S_OK}, 0
    s_cbranch_scc0 AC_NOZ
    v_lshlrev_b32 v{T}, 8, v{L}
    v_mov_b32 v{T+1}, 0
    v_mov_b32 v{T+2}, 1
    s_mov_b32 s{S_T}, {WS_CNT}
    s_mov_b32 s{S_T+1}, {WS_CNT + 16384}
    buffer_store_dword v{T+1}, v{T}, s[{R_WS}:{R_WS+3}], s{S_T} offen sc1
    buffer_store_dword v{T+1}, v{T}, s[{R_WS}:{R_WS+3}], s{S_T+1} offen sc1
    AC_NOZ:
    """)
    srd(a, R_M, S_DBG, S_DBG + 1, 256)
    def flag():
        a(f"""
        s_cmp_eq_u32 s{S_OK}, 0
        s_cbranch_scc0 AC_NOZ2
        s_waitcnt vmcnt(0)
        s_mov_b64 exec, 1
        buffer_store_dword v{T+2}, v{T+1}, s[{R_M}:{R_M+3}], 0 offen sc1
        s_mov_b64 exec, -1
        AC_NOZ2:
        """)
    stamp(a, 1)
    g.c_run(per=7, after_first=flag)
    stamp(a, 2)
    RD = 14
    rank1(a, g, LDS_STA, RD, 108, 116, 96, 99)
    stamp(a, 3)
    a(f"""
    s_lshr_b32 s{S_T}, s{S_WAVE}, 1
    s_lshl_b32 s{S_T}, s{S_T}, 5
    s_lshl_b32 s{S_T+1}, s{S_P0}, 6
    s_add_u32 s{S_T}, s{S_T}, s{S_T+1}
    v_and_b32 v12, 31, v{L}
    v_add_u32 v12, s{S_T}, v12
    v_lshlrev_b32 v12, 5, v12
    v_lshrrev_b32 v13, 5, v{L}
    v_lshl_add_u32 v12, v13, 4, v12
    s_and_b32 s{S_T+1}, s{S_WAVE}, 1
    s_mul_i32 s{S_T+1}, s{S_T+1}, 3
    s_mov_b32 s{S_T+2}, {f32(QC)}
    s_mov_b32 s{S_T+3}, {f32(QC)}
    """)
    for j in range(3):
        d = g.acc + 16 * j
        o = 104 + 8 * j
        for p in range(8):
            r = d + 2 * p
            a(f"v_mul_f32 v{r}, v{r}, v{RD}")
            a(f"v_mul_f32 v{r+1}, v{r+1}, v{RD}")
            a(f"v_cvt_pk_bf16_f32 v{o+p}, v{r}, v{r+1}")
        a(f"""
        s_lshr_b32 s{S_T}, s{S_T+1}, 1
        s_lshl_b32 s{S_T}, s{S_T}, 3
        s_add_u32 s{S_T}, s{S_T}, s{S_P1}
        s_lshl_b32 s{S_T}, s{S_T}, 1
        s_and_b32 s{S_T+4}, s{S_T+1}, 1
        s_add_u32 s{S_T}, s{S_T}, s{S_T+4}
        s_lshl_b32 s{S_T+4}, s{S_T}, 17
        s_add_u32 s{S_T+5}, s{S_T+4}, 65536
        s_cmp_lt_u32 s{S_T}, 16
        s_cbranch_scc0 AC_NQ{j}
        """)
        for p in range(8):
            r = d + 2 * p
            a(f"v_lshlrev_b32 v{r}, 16, v{o+p}")
            a(f"v_and_b32 v{r+1}, 0xffff0000, v{o+p}")
            a(f"v_mul_f32 v{r}, s{S_T+2}, v{r}")
            a(f"v_mul_f32 v{r+1}, s{S_T+2}, v{r+1}")
            a(f"v_cvt_pk_bf16_f32 v{o+p}, v{r}, v{r+1}")
        a(f"""
        AC_NQ{j}:
        buffer_store_dwordx4 v[{o}:{o+3}], v12, s[{R_WS}:{R_WS+3}], s{S_T+4} offen sc1
        buffer_store_dwordx4 v[{o+4}:{o+7}], v12, s[{R_WS}:{R_WS+3}], s{S_T+5} offen sc1
        s_add_u32 s{S_T+1}, s{S_T+1}, 1
        """)
    a("s_waitcnt vmcnt(0)")
    a("s_barrier")
    attention(a)

def attention(a):
    S_C, S_MODE, S_M0 = S_IT, S_OK, S_MA
    VKA, VVA, VINC, VROW, VDK, VDV = 2, 3, 4, 5, 6, 7
    S_, P, O, C, Q, KF, VF, T = 16, 48, 56, 72, 88, 92, 100, 116
    a("AT_START:")
    a(f"""
    s_mov_b32 s{S_MODE}, 0
    v_and_b32 v{T}, 31, v{L}
    s_lshl_b32 s{S_T}, s{S_WAVE}, 5
    v_add_u32 v{T}, s{S_T}, v{T}
    v_lshlrev_b32 v{T}, 5, v{T}
    v_lshrrev_b32 v{T+1}, 5, v{L}
    v_lshl_add_u32 v{VROW}, v{T+1}, 4, v{T}
    v_lshrrev_b32 v{T}, 1, v{L}
    v_lshlrev_b32 v{T}, 5, v{T}
    v_bfe_u32 v{T+1}, v{L}, 4, 1
    v_xor_b32 v{T+1}, v{T+1}, v{L}
    v_and_b32 v{T+1}, 1, v{T+1}
    v_lshl_add_u32 v{VDK}, v{T+1}, 4, v{T}
    v_lshlrev_b32 v{VDV}, 4, v{L}
    v_add_u32 v{VDV}, {WS_V - WS_K}, v{VDV}
    s_lshl_b32 s{S_T+2}, s{S_P2}, 16
    s_lshl_b32 s{S_T+3}, s{S_P3}, 13
    s_add_u32 s{S_T+3}, s{S_T+3}, s{S_T+2}
    """)
    srd(a, R_A, S_WS, S_WS + 1, WS_END)
    a("s_barrier")
    a(f"s_setprio {os.environ.get('PAT', '0')}")
    stamp(a, 4)
    a(f"buffer_load_dwordx4 v[{Q}:{Q+3}], v{VROW}, s[{R_WS}:{R_WS+3}], s{S_T+3} offen")
    def dma_chunk():
        return [f"s_add_u32 m0, s{S_M0}, {LDS_K}",
                f"buffer_load_dwordx4 v{VDK}, s[{R_A}:{R_A+3}], s{S_KA} offen lds",
                f"s_add_u32 m0, s{S_M0}, {LDS_V}",
                f"buffer_load_dwordx4 v{VDV}, s[{R_A}:{R_A+3}], s{S_KA} offen lds",
                f"s_add_u32 s{S_KA}, s{S_KA}, 8192",
                f"s_add_u32 s{S_M0}, s{S_M0}, 8192",
                f"s_and_b32 s{S_M0}, s{S_M0}, 0x7fff"]
    a("AT_RESTART:")
    a(f"""
    s_lshl_b32 s{S_M0}, s{S_WAVE}, 10
    s_add_u32 s{S_KA}, s{S_T+2}, s{S_M0}
    s_add_u32 s{S_KA}, s{S_KA}, {WS_K}
    s_mov_b32 s{R_A+2}, {WS_END}
    """)
    for c in range(3):
        for ins in dma_chunk():
            a(ins)
    a(f"""
    v_and_b32 v{T}, 19, v{L}
    v_bfe_u32 v{T+1}, v{L}, 2, 1
    v_lshl_add_u32 v{T}, v{T+1}, 3, v{T}
    v_bfe_u32 v{T+2}, v{L}, 3, 1
    v_lshl_add_u32 v{T}, v{T+2}, 2, v{T}
    v_lshlrev_b32 v{T}, 5, v{T}
    v_lshrrev_b32 v{T+2}, 5, v{L}
    v_xor_b32 v{T+1}, v{T+1}, v{T+2}
    v_lshl_add_u32 v{VKA}, v{T+1}, 4, v{T}
    v_bfe_u32 v{T}, v{L}, 2, 2
    v_lshl_add_u32 v{T}, v{T+2}, 3, v{T}
    v_lshlrev_b32 v{T}, 5, v{T}
    v_and_b32 v{T+1}, 1, v{L}
    v_lshl_add_u32 v{T}, v{T+1}, 4, v{T}
    v_bfe_u32 v{T+1}, v{L}, 1, 1
    v_lshl_add_u32 v{T}, v{T+1}, 3, v{T}
    v_bfe_u32 v{T+1}, v{L}, 4, 1
    v_cmp_eq_u32 vcc, 1, v{T+1}
    v_add_u32 v{T+1}, {LDS_ONES + 128}, v{T}
    v_cndmask_b32 v{VVA}, v{T}, v{T+1}, vcc
    v_mov_b32 v{T+1}, 8192
    v_cndmask_b32 v{VINC}, v{T+1}, 0, vcc
    """)
    for r in list(range(O, O + 16)) + list(range(P, P + 8)) + list(range(VF + 8, VF + 16)):
        a(f"v_mov_b32 v{r}, 0")
    a("s_waitcnt vmcnt(4)")
    a("s_barrier")
    stamp(a, 5)
    def kread(p, kt):
        return f"ds_read_b128 v[{KF+4*p}:{KF+4*p+3}], v{VKA} offset:{LDS_K+1024*kt}"
    def vreads(p, kt):
        return [f"ds_read_b64_tr_b16 v[{VF+8*p+4*u+2*t}:{VF+8*p+4*u+2*t+1}], v{VVA} offset:{1024*kt+512*u+128*t}" for u in range(2) for t in range(2)]
    def qk(sp, p, useC=True):
        c = f"v[{C}:{C+15}]" if useC else "0"
        S = S_ + 16 * sp
        return f"v_mfma_f32_32x32x16_bf16 v[{S}:{S+15}], v[{KF+4*p}:{KF+4*p+3}], v[{Q}:{Q+3}], {c}"
    def pv(p, u):
        return f"v_mfma_f32_32x32x16_bf16 v[{O}:{O+15}], v[{VF+8*p+4*u}:{VF+8*p+4*u+3}], v[{P+4*u}:{P+4*u+3}], v[{O}:{O+15}]"
    a(kread(0, 0))
    a(kread(1, 1))
    a(f"s_cmp_eq_u32 s{S_MODE}, 1")
    a("s_waitcnt lgkmcnt(0)")
    a("s_cbranch_scc1 AT_HAVE_M")
    a(qk(0, 0, False))
    a(qk(1, 1, False))
    a(f"v_max3_f32 v{T}, v{S_}, v{S_+1}, v{S_+2}")
    for i in range(3, 31, 2):
        a(f"v_max3_f32 v{T}, v{T}, v{S_+i}, v{S_+i+1}")
    a(f"v_max_f32 v{T}, v{T}, v{S_+31}")
    a(f"s_mov_b32 s{S_T}, {f32(-TOFF)}")
    a("AT_FINM:")
    a(f"v_mov_b32 v{T+2}, v{T}")
    a(f"v_permlane32_swap_b32 v{T}, v{T+2}")
    a(f"v_max_f32 v{T}, v{T}, v{T+2}")
    a(f"v_sub_f32 v{C}, s{S_T}, v{T}")
    for i in range(1, 16):
        a(f"v_mov_b32 v{C+i}, v{C}")
    a(f"""
    s_cmp_eq_u32 s{S_MODE}, 0
    s_cbranch_scc1 AT_HAVE_M
    s_barrier
    s_branch AT_RESTART
    AT_HAVE_M:
    """)
    a(qk(0, 0))
    a(f"s_mov_b32 s{S_C}, 0")
    if "AT" in os.environ.get("PROF", ""):
        a("s_memtime s[0:1]\ns_waitcnt lgkmcnt(0)\ns_mov_b32 s11, s0")
    a("AT_LOOP:")
    for kt in range(8):
        p = kt & 1
        S = S_ + 16 * p
        extra = []
        if kt == 0:
            a("s_waitcnt vmcnt(2) lgkmcnt(0)")
            a("s_barrier")
        else:
            a("s_waitcnt lgkmcnt(0)")
        a(qk(1 - p, 1 - p))
        extra += vreads(p, kt)
        if kt == 6:
            extra += [f"v_add_u32 v{VKA}, 8192, v{VKA}", f"v_and_b32 v{VKA}, 0x7fff, v{VKA}"]
        extra += [kread(p, (kt + 2) % 8)]
        if kt == 7:
            extra += [f"v_add_u32 v{VVA}, v{VINC}, v{VVA}", f"v_and_b32 v{VVA}, 0x17fff, v{VVA}",
                      f"s_add_u32 s{S_C}, s{S_C}, 1", f"s_cmp_lt_u32 s{S_C}, 8"]
        if kt == 0:
            extra += [f"s_cmp_lt_u32 s{S_C}, 5", f"s_cselect_b32 s{R_A+2}, {WS_END}, 0"] + dma_chunk()
        ex = [f"v_exp_f32 v{S+i}, v{S+i}" for i in range(16)]
        cv = [f"v_cvt_pk_bf16_f32 v{P+i}, v{S+2*i}, v{S+2*i+1}" for i in range(8)]
        seq = ex[:4] + [pv(1 - p, 0)] + ex[4:8] + [pv(1 - p, 1)] + ex[8:] + cv
        for ins in seq:
            a(ins)
            if extra and ins.startswith("v_exp"):
                a(extra.pop(0))
        for e in extra:
            a(e)
    a("s_cbranch_scc1 AT_LOOP")
    a("s_waitcnt lgkmcnt(0)")
    a(pv(1, 0))
    a(pv(1, 1))
    if "AT" in os.environ.get("PROF", ""):
        a("s_memtime s[0:1]\ns_waitcnt lgkmcnt(0)\ns_sub_u32 s64, s0, s11")
    stamp(a, 6)
    a(f"""
    s_cmp_eq_u32 s{S_MODE}, 1
    s_cbranch_scc1 AT_FIN
    s_mov_b32 s{S_T+6}, {f32(LLIM)}
    v_cmp_nlt_f32 vcc, v{O+8}, s{S_T+6}
    v_add_f32 v{T+2}, abs(v{O}), abs(v{O+1})
    """)
    for i in range(2, 8):
        a(f"v_add_f32 v{T+2}, v{T+2}, abs(v{O+i})")
    a(f"""
    s_mov_b32 s{S_T+6}, 0x203
    v_cmp_class_f32 s[{S_T+4}:{S_T+5}], v{T+2}, s{S_T+6}
    s_or_b64 vcc, vcc, s[{S_T+4}:{S_T+5}]
    s_cmp_lg_u64 vcc, 0
    s_cselect_b32 s{S_T}, 1, 0
    v_mov_b32 v{T}, s{S_T}
    s_lshl_b32 s{S_T+1}, s{S_WAVE}, 2
    s_add_u32 s{S_T+1}, s{S_T+1}, {LDS_VOTE}
    v_mov_b32 v{T+1}, s{S_T+1}
    ds_write_b32 v{T+1}, v{T}
    s_waitcnt vmcnt(0) lgkmcnt(0)
    s_barrier
    v_and_b32 v{T+1}, 7, v{L}
    v_lshlrev_b32 v{T+1}, 2, v{T+1}
    v_add_u32 v{T+1}, {LDS_VOTE}, v{T+1}
    ds_read_b32 v{T}, v{T+1}
    s_waitcnt lgkmcnt(0)
    v_cmp_ne_u32 vcc, 0, v{T}
    s_nop 4
    s_cbranch_vccz AT_FIN
    s_mov_b32 s{S_MODE}, 1
    v_and_b32 v{T+4}, 31, v{L}
    v_lshlrev_b32 v{T+4}, 5, v{T+4}
    v_lshrrev_b32 v{T+5}, 5, v{L}
    v_lshl_add_u32 v{T+4}, v{T+5}, 4, v{T+4}
    s_add_u32 s{S_T}, s{S_T+2}, {WS_K}
    s_mov_b32 s{S_T+1}, 0
    v_mov_b32 v{T}, 0xff800000
    AT_MAXLOOP:
    buffer_load_dwordx4 v[{KF}:{KF+3}], v{T+4}, s[{R_WS}:{R_WS+3}], s{S_T} offen
    s_waitcnt vmcnt(0)
    """)
    a(qk(0, 0, False))
    for i in range(0, 16, 2):
        a(f"v_max3_f32 v{T}, v{T}, v{S_+i}, v{S_+i+1}")
    a(f"""
    s_add_u32 s{S_T}, s{S_T}, 1024
    s_add_u32 s{S_T+1}, s{S_T+1}, 1
    s_cmp_lt_u32 s{S_T+1}, 64
    s_cbranch_scc1 AT_MAXLOOP
    s_mov_b32 s{S_T}, 0
    s_branch AT_FINM
    AT_FIN:
    v_rcp_f32 v{T}, v{O+8}
    s_add_u32 s{S_T}, s{S_T+3}, {WS_O}
    v_mov_b32 v{T+1}, v{T}
    """)
    for i in range(4):
        a(f"v_mul_f32 v{O+2*i}, v{O+2*i}, v{T}")
        a(f"v_mul_f32 v{O+2*i+1}, v{O+2*i+1}, v{T}")
        a(f"v_cvt_pk_bf16_f32 v{P+i}, v{O+2*i}, v{O+2*i+1}")
    a(f"""
    buffer_store_dwordx4 v[{P}:{P+3}], v{VROW}, s[{R_WS}:{R_WS+3}], s{S_T} offen sc1
    s_lshl_b32 s{S_T}, s{S_P3}, 1
    s_lshr_b32 s{S_T+1}, s{S_P2}, 4
    s_add_u32 s{S_T}, s{S_T}, s{S_T+1}
    s_add_u32 s{S_T}, s{S_T}, {C_S5}
    s_waitcnt vmcnt(0)
    s_barrier
    s_cmp_eq_u32 s{S_WAVE}, 0
    s_cbranch_scc0 AT_END
    """)
    signal(a, S_T, T)
    a("AT_END:")
    if STAMP:
        a(f"s_mov_b32 s{70+2*12}, s{S_MODE}")
    stamp_flush(a, R_WS, S_WAVE, vbase=16)
    a("s_endpgm")
```

```python
from mega import *

SSM = os.environ.get('SS', '1') == '1'
WIN = int(os.environ.get('WIN', '8'))
PF2 = int(os.environ.get('PF2', '1'))
def gZ(a):
    return G2(a, "B1", BM=128, NT=4, mt=2, nt=2, NA=2, NBB=4, ND=16, lds_a=0, lds_b=32768, acc=16, fr=80, va=4, vb=8, G=1,
              st=dict(vb1=10, rows=[124, 126], cols=112, sel=120, tmp=(0, 15)), **GK)
def gS(a):
    return G2(a, "B2", BM=64, NT=4, mt=1, nt=2, NA=3, NBB=6, ND=64, lds_a=0, lds_b=24576, acc=16, fr=48, va=4, vb=8, bblk=True, SS=SSM, **GK)
def gH(a):
    return G2(a, "B3", BM=64, NT=2, mt=1, nt=1, NA=4, NBB=8, ND=28, lds_a=0, lds_b=32768, acc=16, fr=48, va=4, vb=8, ablk=True, SS=SSM, **GK)
def gF(a):
    return G2(a, "B4", BM=64, NT=2, mt=1, nt=1, NA=6, NBB=8, ND=16, lds_a=0, lds_b=49152, acc=16, fr=48, va=4, vb=8, ablk=True, SS=SSM, **GK)

def b_params(a):
    a(f"""
    s_bfe_u32 s{S_P0}, s{S_IDX}, 0x20001
    s_lshl_b32 s{S_P0}, s{S_P0}, 2
    s_bfe_u32 s{S_T}, s{S_IDX}, 0x20003
    s_add_u32 s{S_P0}, s{S_P0}, s{S_T}
    s_and_b32 s{S_P1}, s{S_IDX}, 1
    s_mul_i32 s{S_P1}, s{S_P1}, 7
    s_lshr_b32 s{S_P3}, s{S_IDX}, 5
    s_add_u32 s{S_P1}, s{S_P1}, s{S_P3}
    s_and_b32 s{S_P2}, s{S_IDX}, 7
    s_lshl_b32 s{S_P2}, s{S_P2}, 2
    s_add_u32 s{S_P2}, s{S_P2}, s{S_T}
    """)

def b_loader(a):
    g, gs, gh, gf = gZ(a), gS(a), gH(a), gF(a)
    VP16, VL16 = 5, 16
    a("s_setprio 3")
    loader_lane_setup(a, 60)
    a(f"""
    v_and_b32 v{VP16}, 1, v{L}
    v_mul_u32_u24 v{VP16}, {7*256}, v{VP16}
    v_lshlrev_b32 v{VL16}, 4, v{L}
    v_mov_b32 v{VZ0}, 0
    v_mov_b32 v{VZF}, 0
    s_cmp_lt_u32 s{S_IDX}, 224
    s_cbranch_scc1 BL_Z
    s_waitcnt lgkmcnt(0)
    """)
    srd(a, R_WS, S_WS, S_WS + 1, WS_END)
    srd(a, R_M, S_DBG, S_DBG + 1, 256)
    a("s_branch BL_H")
    a("BL_Z:")
    g.l_setup_a(8, 1024, 60)
    g.l_setup_b(12, 3584, 60)
    g.l_bind(R_A, R_B, S_KA, S_KB)
    a(f"""
    s_lshl_b32 s{S_KA}, s{S_P0}, 17
    s_lshl_b32 s{S_KB}, s{S_P1}, 8
    s_add_u32 s{S_T}, s{S_P0}, s{S_P3}
    s_lshl_b32 s{S_T}, s{S_T}, 1
    s_and_b32 s{S_T}, s{S_T}, {7*ROT}
    """)
    g.l_rot(S_T)
    a("s_waitcnt lgkmcnt(0)")
    srd(a, R_A, S_X, S_X + 1, 2048 * 1024)
    srd(a, R_B, S_WIN, S_WIN + 1, 512 * 3584)
    order = g.pro_order()
    g.l_issue(order)
    srd(a, R_WS, S_WS, S_WS + 1, WS_END)
    stamp(a, 1)
    g.l_run(order)
    z0_issue(a)
    gs.l_setup_a(8, 4096, 60)
    gs.l_setup_b(12, None, 60)
    gs.l_bind(R_A, R_WS, S_KA, S_KB)
    srd(a, R_A, S_WSP, S_WSP + 1, 2048 * 4096)
    a(f"""
    s_lshl_b32 s{S_KA}, s{S_P2}, 18
    s_lshl_b32 s{S_KB}, s{S_P3}, 19
    s_add_u32 s{S_KB}, s{S_KB}, {WS_Z2N}
    s_mul_i32 s{S_T}, s{S_P3}, {max(1, WIN//8) if WIN else 5}
    s_mul_i32 s{S_T+1}, s{S_P2}, {WIN//4 if WIN else 8}
    s_add_u32 s{S_T}, s{S_T}, s{S_T+1}
    s_and_b32 s{S_T}, s{S_T}, {((WIN-1) if WIN else 31)*ROT}
    """)
    gs.l_rot(S_T, WIN)
    a(f"""
    s_cmp_lt_u32 s{S_P1}, 7
    s_cselect_b32 s{S_T}, 1, s{S_LW}
    s_cmp_eq_u32 s{S_T}, 0
    s_cbranch_scc1 BL_MLN
    """)
    oa, ob = gs.pro_order("a"), gs.pro_order("b")
    gs.l_issue(oa)
    if PF2:
        a(f"""
        v_lshlrev_b32 v60, 12, v{L}
        s_mul_i32 s{S_T}, s{S_P3}, 5
        s_lshl_b32 s{S_T+1}, s{S_LW}, 1
        s_add_u32 s{S_T}, s{S_T}, s{S_T+1}
        s_add_u32 s{S_T}, s{S_T}, 30
        s_and_b32 s{S_T+1}, s{S_T}, 31
        s_lshl_b32 s{S_T+1}, s{S_T+1}, 7
        s_add_u32 s{S_T+1}, s{S_T+1}, s{S_KA0}
        s_add_u32 s{S_T}, s{S_T}, 1
        s_and_b32 s{S_T}, s{S_T}, 31
        s_lshl_b32 s{S_T}, s{S_T}, 7
        s_add_u32 s{S_T}, s{S_T}, s{S_KA0}
        s_cmp_eq_u32 s{S_LW}, 0
        s_cbranch_scc1 BL_NOPF
        buffer_load_dword v61, v60, s[{R_A}:{R_A+3}], s{S_T+1} offen
        buffer_load_dword v61, v60, s[{R_A}:{R_A+3}], s{S_T} offen
        """)
        if PF2 == 2:
            a(f"""
            buffer_load_dword v61, v60, s[{R_A}:{R_A+3}], s{S_T+1} offen offset:64
            buffer_load_dword v61, v60, s[{R_A}:{R_A+3}], s{S_T} offen offset:64
            """)
        a("BL_NOPF:")
    a(f"""
    s_barrier
    s_cmp_lt_u32 s{S_P1}, 7
    s_cbranch_scc1 BL_NOLN
    s_barrier
    s_barrier
    s_branch BL_NOLN
    BL_MLN:
    s_barrier
    v_add_u32 v60, {LDS_LNS}, v{VL16}
    s_mul_i32 s{S_T}, s{S_P0}, 7168
    s_add_u32 s{S_T}, s{S_T}, {WS_LNP}
    s_sub_u32 s{S_T+1}, s{S_P1}, 7
    s_lshl_b32 s{S_T+1}, s{S_T+1}, 10
    s_add_u32 s{S_T+1}, s{S_T+1}, s{S_T}
    s_add_u32 s{S_T+2}, s{S_P0}, {C_S2}
    s_lshl_b32 s{S_T+3}, s{S_T+2}, 8
    s_add_u32 s{S_T+3}, s{S_T+3}, {WS_CNT}
    s_waitcnt vmcnt(0)
    """)
    stamp(a, 2)
    z0_check(a, "BLA")
    a(f"""
    s_barrier
    ds_read_b128 v[64:67], v60
    ds_read_b128 v[68:71], v60 offset:1024
    ds_read_b128 v[72:75], v60 offset:2048
    ds_read_b128 v[76:79], v60 offset:3072
    s_waitcnt lgkmcnt(0)
    v_pk_add_f32 v[64:65], v[64:65], v[68:69]
    v_pk_add_f32 v[66:67], v[66:67], v[70:71]
    v_pk_add_f32 v[72:73], v[72:73], v[76:77]
    v_pk_add_f32 v[74:75], v[74:75], v[78:79]
    v_pk_add_f32 v[64:65], v[64:65], v[72:73]
    v_pk_add_f32 v[66:67], v[66:67], v[74:75]
    buffer_store_dwordx4 v[64:67], v{VL16}, s[{R_WS}:{R_WS+3}], s{S_T+1} offen sc1
    s_waitcnt vmcnt(0)
    """)
    stamp(a, 3)
    signal(a, S_T + 2, 60)
    poll(a, "BL_S2", R_WS, VZ0, f"s{S_T+3}", 7, 60, inv=False)
    a(f"s_mov_b32 m0, {LDS_LNQ}")
    for e in range(4):
        a(f"buffer_load_dwordx4 v{VL16}, s[{R_WS}:{R_WS+3}], s{S_T} offen offset:{e*1024} sc1 lds")
    a(f"s_mov_b32 m0, {LDS_LNQ+4096}")
    a(f"s_add_u32 s{S_T}, s{S_T}, 4096")
    for e in range(3):
        a(f"buffer_load_dwordx4 v{VL16}, s[{R_WS}:{R_WS+3}], s{S_T} offen offset:{e*1024} sc1 lds")
    a(f"""
    s_waitcnt vmcnt(0)
    s_barrier
    """)
    stamp(a, 4)
    gs.l_issue(oa)
    a(f"""
    BL_NOLN:
    s_add_u32 s{S_T}, s{S_P1}, {C_S3}
    s_lshl_b32 s{S_T+1}, s{S_P3}, 8
    s_add_u32 s{S_T+1}, s{S_T+1}, {WS_CNT + C_S3*256}
    s_barrier
    s_cmp_eq_u32 s{S_LW}, 0
    s_cbranch_scc0 BL_G3
    s_waitcnt vmcnt({len(oa)*gs.qa})
    """)
    stamp(a, 5)
    z0_check(a, "BLB")
    signal(a, S_T, 60)
    poll(a, "BL_S3", R_WS, VP16, f"s{S_T+1}", 16, 60)
    a("BL_G3:")
    a("s_barrier")
    stamp(a, 6)
    gs.l_issue(ob)
    gs.l_run(oa + ob)
    stamp(a, 7)
    a("BL_H:")
    gh.l_setup_a(8, None, 60)
    gh.l_setup_b(12, 1024, 60)
    gh.l_bind(R_WS, R_B, S_KA, S_KB)
    srd(a, R_B, S_WOUT, S_WOUT + 1, 896 * 1024)
    a(f"""
    s_lshl_b32 s{S_KA}, s{S_P2}, 11
    s_add_u32 s{S_KA}, s{S_KA}, {WS_H}
    s_lshl_b32 s{S_KB}, s{S_P3}, 7
    s_and_b32 s{S_T}, s{S_P2}, 3
    s_lshl_b32 s{S_T}, s{S_T}, 1
    s_add_u32 s{S_T}, s{S_T}, s{S_P3}
    s_lshl_b32 s{S_T}, s{S_T}, 1
    s_sub_u32 s{S_T+1}, s{S_T}, 14
    s_cmp_ge_u32 s{S_T}, 14
    s_cselect_b32 s{S_T}, s{S_T+1}, s{S_T}
    s_mul_i32 s{S_T}, s{S_T}, {ROT}
    """)
    gh.l_rot(S_T)
    oa, ob = gh.pro_order("a"), gh.pro_order("b")
    gh.l_issue(ob)
    a(f"""
    s_add_u32 s{S_T}, s{S_P2}, {C_S4}
    s_lshl_b32 s{S_T+1}, s{S_T}, 8
    s_add_u32 s{S_T+1}, s{S_T+1}, {WS_CNT}
    s_cmp_lt_u32 s{S_IDX}, 224
    s_cbranch_scc0 BL_NS4
    s_barrier
    s_cmp_eq_u32 s{S_LW}, 0
    s_cbranch_scc0 BL_G4
    """)
    signal(a, S_T, 60)
    a(f"""
    BL_NS4:
    s_cmp_eq_u32 s{S_LW}, 0
    s_cbranch_scc0 BL_G4
    """)
    stamp(a, 8)
    z0_check(a, "BLC")
    poll(a, "BL_S4", R_WS, VZ0, f"s{S_T+1}", 7, 60)
    a("BL_G4:")
    a("s_barrier")
    stamp(a, 9)
    gh.l_issue(oa)
    gh.l_run(ob + oa)
    for k in ("vda", "vdb", "ka_step", "kb_step", "b_imm"):
        setattr(gf, k, getattr(gh, k))
    gf.l_bind(R_WS, R_B, S_KA, S_KB)
    srd(a, R_B, S_WO, S_WO + 1, 512 * 1024)
    a(f"""
    s_lshl_b32 s{S_KA}, s{S_P2}, 11
    s_add_u32 s{S_KA}, s{S_KA}, {WS_O}
    s_lshl_b32 s{S_KB}, s{S_P3}, 7
    s_lshl_b32 s{S_T}, s{S_P2}, 1
    s_add_u32 s{S_T}, s{S_T}, s{S_P3}
    s_and_b32 s{S_T}, s{S_T}, {7*ROT}
    """)
    gf.l_rot(S_T)
    a(f"""
    v_and_b32 v61, 1, v{L}
    v_lshlrev_b32 v61, 8, v61
    s_and_b32 s{S_T+1}, s{S_IDX}, 7
    s_lshl_b32 s{S_T+1}, s{S_T+1}, 9
    s_add_u32 s{S_T+1}, s{S_T+1}, {WS_CNT + C_S5*256}
    """)
    oa, ob = gf.pro_order("a"), gf.pro_order("b")
    gf.l_issue(ob)
    stamp(a, 10)
    a(f"""
    s_cmp_eq_u32 s{S_LW}, 0
    s_cbranch_scc0 BL_G5
    """)
    poll(a, "BL_S5", R_WS, 61, f"s{S_T+1}", 16, 60)
    a("BL_G5:")
    a("s_barrier")
    stamp(a, 11)
    gf.l_issue(oa)
    gf.l_run(ob + oa)
    stamp_flush(a, R_WS, S_WAVE)
    a("s_endpgm")


VD = 15
OFS = [0, 64] if (PF == 2 or PF2 == 2) else [0]

def pf_wout(a, T):
    a(f"""
    s_bfe_u32 s{S_T}, s{S_IDX}, 0x20003
    s_lshl_b32 s{S_T}, s{S_T}, 2
    s_add_u32 s{S_T}, s{S_T}, s{S_WAVE}
    s_mul_i32 s{S_T+1}, s{S_T}, {56*1024}
    s_lshl_b32 s{S_T}, s{S_T}, 15
    s_lshl_b32 s{S_T+2}, s{S_P3}, 7
    s_add_u32 s{S_T}, s{S_T}, s{S_T+2}
    s_add_u32 s{S_T+1}, s{S_T+1}, s{S_T+2}
    v_min_u32 v{T}, 55, v{L}
    v_lshlrev_b32 v{T}, 10, v{T}
    v_and_b32 v{T+1}, 31, v{L}
    v_lshlrev_b32 v{T+1}, 10, v{T+1}
    v_lshrrev_b32 v{T+2}, 5, v{L}
    v_lshl_add_u32 v{T+1}, v{T+2}, 6, v{T+1}
    """)
    srd(a, R_A, S_WOUT, S_WOUT + 1, 896 * 1024)
    srd(a, R_B, S_WO, S_WO + 1, 512 * 1024)
    for o in OFS:
        a(f"buffer_load_dword v{VD}, v{T}, s[{R_A}:{R_A+3}], s{S_T+1} offen offset:{o}")
    a(f"buffer_load_dword v{VD}, v{T+1}, s[{R_B}:{R_B+3}], s{S_T} offen")

def b_compute(a):
    g, gs, gh, gf = gZ(a), gS(a), gH(a), gF(a)
    T = 112
    a("s_setprio 1")
    compute_lane_setup(a, T)
    VR = 12
    a(f"""
    s_lshr_b32 s{S_T}, s{S_WAVE}, 1
    s_lshl_b32 s{S_T}, s{S_T}, 5
    s_lshl_b32 s{S_T+1}, s{S_P2}, 6
    s_add_u32 s{S_T}, s{S_T}, s{S_T+1}
    v_and_b32 v{T}, 31, v{L}
    v_add_u32 v{VR+1}, s{S_T}, v{T}
    v_lshrrev_b32 v{T+1}, 5, v{L}
    v_lshlrev_b32 v{T+1}, 4, v{T+1}
    v_lshl_add_u32 v{VR}, v{VR+1}, 5, v{T+1}
    v_lshl_add_u32 v{VR+2}, v{VR+1}, 10, v{T+1}
    s_waitcnt lgkmcnt(0)
    """)
    srd(a, R_WS, S_WS, S_WS + 1, WS_END)
    a(f"""
    s_cmp_lt_u32 s{S_IDX}, 224
    s_cbranch_scc1 BC_Z
    """)
    if PF:
        srd(a, R_A, S_WSP, S_WSP + 1, 2048 * 4096)
        a(f"""
        v_lshlrev_b32 v{T}, 12, v{L}
        s_lshl_b32 s{S_T}, s{S_P2}, 18
        s_lshl_b32 s{S_T+1}, s{S_WAVE}, 7
        s_add_u32 s{S_T}, s{S_T}, s{S_T+1}
        buffer_load_dword v{VD}, v{T}, s[{R_A}:{R_A+3}], s{S_T} offen
        s_waitcnt vmcnt(0)
        """)
        for i in range(8):
            for o in OFS:
                if i or o:
                    a(f"buffer_load_dword v{VD}, v{T}, s[{R_A}:{R_A+3}], s{S_T} offen offset:{i*512+o}")
        a("s_waitcnt vmcnt(0)")
    a("s_branch BC_H")
    a("BC_Z:")
    if PF:
        srd(a, R_A, S_WIN, S_WIN + 1, 512 * 3584)
        a(f"""
        v_lshrrev_b32 v{T}, 1, v{L}
        v_mul_u32_u24 v{T}, 3584, v{T}
        v_and_b32 v{T+1}, 1, v{L}
        v_lshl_add_u32 v{T}, v{T+1}, 7, v{T}
        s_bfe_u32 s{S_T}, s{S_IDX}, 0x20003
        s_lshl_b32 s{S_T}, s{S_T}, 2
        s_add_u32 s{S_T}, s{S_T}, s{S_WAVE}
        s_mul_i32 s{S_T}, s{S_T}, {32*3584}
        s_lshl_b32 s{S_T+1}, s{S_P1}, 8
        s_add_u32 s{S_T}, s{S_T}, s{S_T+1}
        """)
        for o in OFS:
            a(f"buffer_load_dword v{VD}, v{T}, s[{R_A}:{R_A+3}], s{S_T} offen offset:{o}")
    g.c_setup()
    g.zero_acc()
    stamp(a, 1)
    g.c_run(per=7)
    stamp(a, 2)
    RD = 4
    rank1(a, g, LDS_STB, RD, 120, 96, 112, 114)
    stamp(a, 3)
    K0 = -2.0 * 0.7978845608028654 * 1.4426950408889634
    K1c = K0 * 0.044715
    PK, t = 80, 112
    U = 116
    a(f"""
    s_mov_b32 s{S_T+2}, {f32(K1c)}
    s_mov_b32 s{S_T+3}, {f32(K1c)}
    v_mov_b32 v{U+4}, {f32(K0)}
    v_mov_b32 v{U+5}, {f32(K0)}
    s_lshr_b32 s{S_T}, s{S_WAVE}, 1
    s_lshl_b32 s{S_T}, s{S_T}, 6
    v_and_b32 v{U+6}, 31, v{L}
    v_add_u32 v{U+6}, s{S_T}, v{U+6}
    s_lshl_b32 s{S_T+1}, s{S_P0}, 7
    v_add_u32 v{U+7}, s{S_T+1}, v{U+6}
    v_lshrrev_b32 v{U+8}, 5, v{L}
    v_lshlrev_b32 v{U+7}, 5, v{U+7}
    v_lshl_add_u32 v{U+7}, v{U+8}, 4, v{U+7}
    """)
    for j in range(2):
        for i in range(2):
            d = g.acc + (j * 2 + i) * 16
            for hf in range(2):
                o = PK + (j * 2 + i) * 8 + hf * 4
                rs = [d + hf * 8 + 2 * p for p in range(4)]
                for p, r in enumerate(rs):
                    a(f"v_mul_f32 v{r}, v{r}, v{RD+i}")
                    a(f"v_mul_f32 v{r+1}, v{r+1}, v{RD+i}")
                for p, r in enumerate(rs):
                    a(f"v_cvt_pk_bf16_f32 v{o+p}, v{r}, v{r+1}")
                for p, r in enumerate(rs):
                    a(f"v_lshlrev_b32 v{r}, 16, v{o+p}")
                    a(f"v_and_b32 v{r+1}, 0xffff0000, v{o+p}")
                for p, r in enumerate(rs):
                    a(f"v_pk_mul_f32 v[{t+2*p}:{t+2*p+1}], v[{r}:{r+1}], v[{r}:{r+1}]")
                for p, r in enumerate(rs):
                    a(f"v_pk_fma_f32 v[{t+2*p}:{t+2*p+1}], v[{t+2*p}:{t+2*p+1}], s[{S_T+2}:{S_T+3}], v[{U+4}:{U+5}]")
                for p, r in enumerate(rs):
                    a(f"v_pk_mul_f32 v[{t+2*p}:{t+2*p+1}], v[{t+2*p}:{t+2*p+1}], v[{r}:{r+1}]")
                for q in range(8):
                    a(f"v_exp_f32 v{t+q}, v{t+q}")
                for p, r in enumerate(rs):
                    a(f"v_pk_add_f32 v[{t+2*p}:{t+2*p+1}], v[{t+2*p}:{t+2*p+1}], 1.0 op_sel_hi:[1,0]")
                for q in range(8):
                    a(f"v_rcp_f32 v{t+q}, v{t+q}")
                for p, r in enumerate(rs):
                    a(f"v_pk_mul_f32 v[{t+2*p}:{t+2*p+1}], v[{t+2*p}:{t+2*p+1}], v[{r}:{r+1}]")
                for p, r in enumerate(rs):
                    a(f"v_cvt_pk_bf16_f32 v{o+p}, v{t+2*p}, v{t+2*p+1}")
    stamp(a, 4)
    a(f"""
    s_and_b32 s{S_T+1}, s{S_WAVE}, 1
    s_lshl_b32 s{S_T}, s{S_P1}, 19
    s_lshl_b32 s{S_T+4}, s{S_T+1}, 18
    s_add_u32 s{S_T}, s{S_T}, s{S_T+4}
    s_add_u32 s{S_T}, s{S_T}, {WS_Z1}
    s_cmp_lt_u32 s{S_P1}, 7
    s_cbranch_scc1 BC_ZST
    s_add_u32 s{S_T}, s{S_T}, {WS_Z2N - WS_Z1 - 7*8*PL}
    """)
    for j in range(2):
        for p in range(8):
            for i in range(2):
                o = PK + (j * 2 + i) * 8 + p
                r = g.acc + (j * 2 + i) * 16 + 2 * p
                S = t + 4 * i
                a(f"v_lshlrev_b32 v{r}, 16, v{o}")
                a(f"v_and_b32 v{r+1}, 0xffff0000, v{o}")
                if j == 0 and p == 0:
                    a(f"v_mov_b32 v{S}, v{r}\nv_mul_f32 v{S+1}, v{r}, v{r}\nv_mov_b32 v{S+2}, v{r+1}\nv_mul_f32 v{S+3}, v{r+1}, v{r+1}")
                else:
                    a(f"v_add_f32 v{S}, v{S}, v{r}\nv_fmac_f32 v{S+1}, v{r}, v{r}\nv_add_f32 v{S+2}, v{S+2}, v{r+1}\nv_fmac_f32 v{S+3}, v{r+1}, v{r+1}")
    a(f"""
    v_lshl_add_u32 v{U+8}, s{S_T+1}, 1, v{U+8}
    v_lshlrev_b32 v{U+8}, 10, v{U+8}
    v_lshl_add_u32 v{U+8}, v{U+6}, 3, v{U+8}
    v_add_u32 v{U+8}, {LDS_LNS}, v{U+8}
    v_pk_add_f32 v[{t}:{t+1}], v[{t}:{t+1}], v[{t+2}:{t+3}]
    v_pk_add_f32 v[{t+4}:{t+5}], v[{t+4}:{t+5}], v[{t+6}:{t+7}]
    ds_write_b64 v{U+8}, v[{t}:{t+1}]
    ds_write_b64 v{U+8}, v[{t+4}:{t+5}] offset:256
    v_lshlrev_b32 v{U+9}, 3, v{U+6}
    v_add_u32 v{U+9}, {LDS_LNQ}, v{U+9}
    s_waitcnt lgkmcnt(0)
    s_barrier
    """)
    a("s_barrier")
    stamp(a, 5)
    LQ = 80
    for i in range(2):
        for k in range(7):
            a(f"ds_read_b64 v[{LQ+14*i+2*k}:{LQ+14*i+2*k+1}], v{U+9} offset:{1024*k + 256*i}")
    a("s_waitcnt lgkmcnt(0)")
    ls = []
    for i in range(2):
        b = LQ + 14 * i
        M, R = 4 + 4 * i, 6 + 4 * i
        l = [f"v_pk_add_f32 v[{b+4*k}:{b+4*k+1}], v[{b+4*k}:{b+4*k+1}], v[{b+4*k+2}:{b+4*k+3}]" for k in range(3)]
        l += [f"v_pk_add_f32 v[{b}:{b+1}], v[{b}:{b+1}], v[{b+4}:{b+5}]",
              f"v_pk_add_f32 v[{b+8}:{b+9}], v[{b+8}:{b+9}], v[{b+12}:{b+13}]",
              f"v_pk_add_f32 v[{b}:{b+1}], v[{b}:{b+1}], v[{b+8}:{b+9}]",
              f"v_mul_f32 v{M}, {f32(1.0/896)}, v{b}",
              f"v_mul_f32 v{R}, {f32(1.0/896)}, v{b+1}",
              f"v_fma_f32 v{R}, -v{M}, v{M}, v{R}",
              f"v_max_f32 v{R}, 0, v{R}"] + bf16r_l(R, R) + [f"v_add_f32 v{R}, {f32(1e-5)}, v{R}"] + bf16r_l(R, R) + \
             [f"v_sqrt_f32 v{R}, v{R}"] + bf16r_l(R, R) + [f"v_rcp_f32 v{R}, v{R}"] + bf16r_l(M, M) + \
             [f"v_mov_b32 v{M+1}, v{M}", f"v_mov_b32 v{R+1}, v{R}"]
        ls.append(l)
    interleave(a, ls)
    for j in range(2):
        for i in range(2):
            M, R = 4 + 4 * i, 6 + 4 * i
            for hf in range(2):
                pr = [(g.acc + (j * 2 + i) * 16 + 2 * p, PK + (j * 2 + i) * 8 + p) for p in range(4 * hf, 4 * hf + 4)]
                interleave(a, [[f"v_pk_add_f32 v[{r}:{r+1}], v[{r}:{r+1}], v[{M}:{M+1}] neg_lo:[0,1] neg_hi:[0,1]",
                                f"v_cvt_pk_bf16_f32 v{o}, v{r}, v{r+1}",
                                f"v_lshlrev_b32 v{r}, 16, v{o}",
                                f"v_and_b32 v{r+1}, 0xffff0000, v{o}",
                                f"v_pk_mul_f32 v[{r}:{r+1}], v[{r}:{r+1}], v[{R}:{R+1}]",
                                f"v_cvt_pk_bf16_f32 v{o}, v{r}, v{r+1}"] for r, o in pr])
    a("BC_ZST:")
    for j in range(2):
        for hf in range(2):
            for i in range(2):
                o = PK + (j * 2 + i) * 8 + hf * 4
                a(f"buffer_store_dwordx4 v[{o}:{o+3}], v{U+7}, s[{R_WS}:{R_WS+3}], s{S_T} offen offset:{i*1024} sc1")
            a(f"s_add_u32 s{S_T}, s{S_T}, {PL}")
    gs.c_setup()
    gs.zero_acc()
    srd(a, R_M, S_BSP, S_BSP + 1, 4096)
    Z1 = 96
    a(f"""
    v_lshlrev_b32 v{T}, 1, v{VR+1}
    buffer_load_ushort v{T+1}, v{T}, s[{R_M}:{R_M+3}], 0 offen
    s_and_b32 s{S_T+1}, s{S_WAVE}, 1
    s_lshl_b32 s{S_T+4}, s{S_P3}, 19
    s_lshl_b32 s{S_T+1}, s{S_T+1}, 18
    s_add_u32 s{S_T+4}, s{S_T+4}, s{S_T+1}
    s_add_u32 s{S_T+5}, s{S_T+4}, {WS_Z1}
    s_add_u32 s{S_T+4}, s{S_T+4}, {WS_H}
    v_lshrrev_b32 v{T+4}, 3, v{L}
    v_lshlrev_b32 v{T+4}, 16, v{T+4}
    v_and_b32 v{T+5}, 7, v{L}
    v_lshl_add_u32 v{T+4}, v{T+5}, 7, v{T+4}
    s_bfe_u32 s{S_T+6}, s{S_IDX}, 0x20003
    s_lshl_b32 s{S_T+7}, s{S_WAVE}, 2
    s_add_u32 s{S_T+6}, s{S_T+6}, s{S_T+7}
    s_lshl_b32 s{S_T+6}, s{S_T+6}, 10
    s_lshl_b32 s{S_T+7}, s{S_P3}, 19
    s_add_u32 s{S_T+6}, s{S_T+6}, s{S_T+7}
    s_add_u32 s{S_T+6}, s{S_T+6}, {WS_Z2N}
    s_waitcnt vmcnt(0)
    s_barrier
    """)
    stamp(a, 6)
    if PF2:
        pf_wout(a, T + 8)
    a("s_barrier")
    stamp(a, 7)
    if PF:
        for i in range(4):
            for o in OFS:
                a(f"buffer_load_dword v{VD}, v{T+4}, s[{R_WS}:{R_WS+3}], s{S_T+6} offen offset:{o}")
            a(f"s_add_u32 s{S_T+6}, s{S_T+6}, 16384")
    def z1load():
        for k in range(4):
            a(f"buffer_load_dwordx4 v[{Z1+4*k}:{Z1+4*k+3}], v{VR}, s[{R_WS}:{R_WS+3}], s{S_T+5} offen")
            a(f"s_add_u32 s{S_T+5}, s{S_T+5}, {PL}")
    a(f"s_setprio {os.environ.get('PSP', '0')}")
    gs.c_run(per=int(os.environ.get('PER2', '4')), after_first=z1load)
    a("s_setprio 2")
    stamp(a, 8)
    a("s_waitcnt vmcnt(0)")
    a(f"v_lshlrev_b32 v{T+2}, 16, v{T+1}")
    a(f"v_mov_b32 v{T+3}, v{T+2}")
    for k in range(4):
        ls = []
        for p in range(4):
            r = gs.acc + 8 * k + 2 * p
            z = Z1 + 4 * k + p
            F, G_ = T + 4 + p, T + 8 + 2 * p
            ls.append([f"v_cvt_pk_bf16_f32 v{F}, v{r}, v{r+1}",
                       f"v_lshlrev_b32 v{r}, 16, v{F}",
                       f"v_and_b32 v{r+1}, 0xffff0000, v{F}",
                       f"v_pk_add_f32 v[{r}:{r+1}], v[{r}:{r+1}], v[{T+2}:{T+3}]",
                       f"v_cvt_pk_bf16_f32 v{F}, v{r}, v{r+1}",
                       f"v_lshlrev_b32 v{r}, 16, v{F}",
                       f"v_and_b32 v{r+1}, 0xffff0000, v{F}",
                       f"v_lshlrev_b32 v{G_}, 16, v{z}",
                       f"v_and_b32 v{G_+1}, 0xffff0000, v{z}",
                       f"v_pk_mul_f32 v[{r}:{r+1}], v[{r}:{r+1}], v[{G_}:{G_+1}]",
                       f"v_cvt_pk_bf16_f32 v{z}, v{r}, v{r+1}"])
        interleave(a, ls)
        a(f"buffer_store_dwordx4 v[{Z1+4*k}:{Z1+4*k+3}], v{VR}, s[{R_WS}:{R_WS+3}], s{S_T+4} offen sc1")
        a(f"s_add_u32 s{S_T+4}, s{S_T+4}, {PL}")
    a("s_waitcnt vmcnt(0) lgkmcnt(0)")
    a("s_barrier")
    a("BC_H:")
    stamp(a, 9)
    gh.c_setup()
    gh.zero_acc()
    X, BR = 96, 104
    srd(a, R_M, S_X, S_X + 1, 2048 * 1024)
    a(f"""
    s_and_b32 s{S_T+1}, s{S_WAVE}, 1
    s_lshl_b32 s{S_T+1}, s{S_T+1}, 6
    s_lshl_b32 s{S_T+4}, s{S_P3}, 7
    s_add_u32 s{S_T+4}, s{S_T+4}, s{S_T+1}
    buffer_load_dwordx4 v[{X}:{X+3}], v{VR+2}, s[{R_M}:{R_M+3}], s{S_T+4} offen
    buffer_load_dwordx4 v[{X+4}:{X+7}], v{VR+2}, s[{R_M}:{R_M+3}], s{S_T+4} offen offset:32
    v_lshrrev_b32 v{T}, 4, v{L}
    v_lshlrev_b32 v{T}, 16, v{T}
    v_and_b32 v{T+1}, 15, v{L}
    v_lshl_add_u32 v{T}, v{T+1}, 7, v{T}
    s_lshl_b32 s{S_T}, s{S_P3}, 2
    s_add_u32 s{S_T}, s{S_T}, s{S_WAVE}
    s_mul_i32 s{S_T+1}, s{S_T}, 205
    s_lshr_b32 s{S_T+1}, s{S_T+1}, 11
    s_mul_i32 s{S_T+1}, s{S_T+1}, 10
    s_sub_u32 s{S_T}, s{S_T}, s{S_T+1}
    s_lshl_b32 s{S_T}, s{S_T}, 18
    s_lshl_b32 s{S_T+1}, s{S_P2}, 11
    s_add_u32 s{S_T}, s{S_T}, s{S_T+1}
    s_add_u32 s{S_T}, s{S_T}, {WS_H + 16*PL}
    s_barrier
    """)
    if PF:
        for o in OFS:
            a(f"buffer_load_dword v{VD}, v{T}, s[{R_WS}:{R_WS+3}], s{S_T} offen offset:{o}")
    gh.c_run(per=6)
    stamp(a, 10)
    for p in range(8):
        a(f"v_cvt_pk_bf16_f32 v{BR+p}, v{gh.acc+2*p}, v{gh.acc+2*p+1}")
    a("s_waitcnt lgkmcnt(0)")
    gf.c_setup()
    gf.zero_acc()
    srd(a, R_M, S_OUT, S_OUT + 1, 2048 * 1024)
    a("s_barrier")
    gf.c_run(per=6)
    stamp(a, 11)
    a("s_waitcnt vmcnt(0)")
    for hf in range(2):
        ls = []
        for p in range(4 * hf, 4 * hf + 4):
            r = gf.acc + 2 * p
            F, G_ = T + (p & 3), T + 4 + 2 * (p & 3)
            ls.append([f"v_cvt_pk_bf16_f32 v{F}, v{r}, v{r+1}",
                       f"v_lshlrev_b32 v{r}, 16, v{F}",
                       f"v_and_b32 v{r+1}, 0xffff0000, v{F}",
                       f"v_lshlrev_b32 v{G_}, 16, v{X+p}",
                       f"v_and_b32 v{G_+1}, 0xffff0000, v{X+p}",
                       f"v_pk_add_f32 v[{r}:{r+1}], v[{r}:{r+1}], v[{G_}:{G_+1}]",
                       f"v_cvt_pk_bf16_f32 v{F}, v{r}, v{r+1}",
                       f"v_lshlrev_b32 v{r}, 16, v{F}",
                       f"v_and_b32 v{r+1}, 0xffff0000, v{F}",
                       f"v_lshlrev_b32 v{G_}, 16, v{BR+p}",
                       f"v_and_b32 v{G_+1}, 0xffff0000, v{BR+p}",
                       f"v_pk_add_f32 v[{r}:{r+1}], v[{r}:{r+1}], v[{G_}:{G_+1}]",
                       f"v_cvt_pk_bf16_f32 v{X+p}, v{r}, v{r+1}"])
        interleave(a, ls)
        a(f"buffer_store_dwordx4 v[{X+4*hf}:{X+4*hf+3}], v{VR+2}, s[{R_M}:{R_M+3}], s{S_T+4} offen offset:{32*hf}")
    if STAMP:
        a("s_waitcnt lgkmcnt(0)")
    stamp_flush(a, R_WS, S_WAVE, vbase=32)
    a("s_endpgm")


def gen():
    a = Asm()
    name = "mega_kernel"
    a(kernel_header(name))
    a(f"""
    s_cmp_ge_u32 s2, 512
    s_cbranch_scc1 M_END
    """)
    stamp_init(a)
    stamp(a, 0)
    a(f"""
    s_load_dwordx8 s[4:11], s[0:1], 0
    s_load_dwordx8 s[12:19], s[0:1], 32
    s_load_dwordx4 s[20:23], s[0:1], 64
    s_load_dwordx2 s[24:25], s[0:1], 80
    v_and_b32 v{L}, 63, v0
    v_lshrrev_b32 v2, 6, v0
    v_readfirstlane_b32 s{S_WAVE}, v2
    s_and_b32 s{S_IDX}, s2, 255
    s_sub_u32 s{S_LW}, s{S_WAVE}, 4
    s_cmp_ge_u32 s2, 256
    s_cbranch_scc1 M_B
    """)
    a_params(a)
    a(f"""
    s_cmp_ge_u32 s{S_WAVE}, 4
    s_cbranch_scc0 M_AC
    """)
    a_loader(a)
    a("M_AC:")
    a_compute(a)
    a("M_B:")
    b_params(a)
    a(f"""
    s_cmp_ge_u32 s{S_WAVE}, 4
    s_cbranch_scc0 M_BC
    """)
    b_loader(a)
    a("M_BC:")
    b_compute(a)
    a("M_END:")
    a("s_endpgm")
    return name, a.render(), kernel_desc(name, 128, 128)

HEAD = open("parallel_sum__softmax_full_mha__mixer_gmlp__prompt.s.ref").read().split("; Override launch")[0]
if __name__ == "__main__":
    n, t, d = gen()
    out = HEAD + f"; @launch kernel={n} grid=(512,1,1) block=(512,1,1) lds=81920\n"
    out += '.amdgcn_target "amdgcn-amd-amdhsa--gfx950"\n.text\n' + t + '.section .rodata,"a"\n.p2align 6\n' + d
    path = sys.argv[1] if len(sys.argv) > 1 else "parallel_sum__softmax_full_mha__mixer_gmlp__prompt.s"
    open(path, "w").write(out)
    print("wrote", path, len(out))
```

```python
from common import *

def lcm(x, y):
    return x * y // math.gcd(x, y)

V_LANE, V_AOFF, V_BOFF = 1, 2, 3
V_ROW, V_CHA, V_CHB = 2, 3, 4
LDS_MAX = 81920

def compute_lane_setup(a, t):
    L = V_LANE
    a(f"""
    v_and_b32 v{t}, 31, v{L}
    v_lshrrev_b32 v{t+1}, 5, v{L}
    v_bfe_u32 v{t+2}, v{t}, 1, 3
    v_xor_b32 v{t+2}, v{t+2}, v{t+1}
    v_lshlrev_b32 v{t+2}, 4, v{t+2}
    v_lshl_add_u32 v{V_AOFF}, v{t}, 7, v{t+2}
    v_bfe_u32 v{t+2}, v{L}, 2, 2
    v_lshl_add_u32 v{t+3}, v{t+1}, 3, v{t+2}
    v_lshlrev_b32 v{t+3}, 7, v{t+3}
    v_bfe_u32 v{t+4}, v{L}, 3, 1
    v_lshl_add_u32 v{t+3}, v{t+4}, 6, v{t+3}
    v_bfe_u32 v{t+4}, v{L}, 4, 1
    v_lshl_add_u32 v{t+3}, v{t+4}, 5, v{t+3}
    v_and_b32 v{t+4}, 1, v{L}
    v_lshl_add_u32 v{t+3}, v{t+4}, 4, v{t+3}
    v_bfe_u32 v{t+4}, v{L}, 1, 1
    v_lshl_add_u32 v{V_BOFF}, v{t+4}, 3, v{t+3}
    """)

def loader_lane_setup(a, t):
    L = V_LANE
    a(f"""
    v_lshrrev_b32 v{V_ROW}, 3, v{L}
    v_lshrrev_b32 v{t}, 4, v{L}
    v_and_b32 v{t+1}, 7, v{L}
    v_xor_b32 v{V_CHA}, v{t}, v{t+1}
    v_bfe_u32 v{t}, v{L}, 2, 1
    v_bfe_u32 v{t+1}, v{L}, 4, 1
    v_xor_b32 v{t}, v{t}, v{t+1}
    v_and_b32 v{t+1}, 3, v{L}
    v_lshl_add_u32 v{V_CHB}, v{t}, 2, v{t+1}
    """)

PLS = 1152
S_KA0, S_KA1, S_KB0, S_KB1, S_ROT, S_RT = 98, 99, 100, 101, 63, 53

class G2:
    def __init__(self, a, name, BM, NT, mt, nt, NA, NBB, ND, lds_a, lds_b, acc, fr, va, vb, s_wave, s_tmp, s_it, s_lw, s_ma, s_mb, G=2, st=None, s_one=None, ablk=False, bblk=False, SS=False, jmaj=False):
        self.__dict__.update(locals())
        self.AB = BM * 128
        self.BB = 2 * NT * PLS if bblk else (NT // 2) * 4096
        self.qa = BM // 32
        self.qb = NT // 2
        self.FS = 4 * G * (mt + nt)
        self.period = lcm(NA, NBB // 2) if SS else lcm(2 * NA, NBB)
        assert lds_a + NA * self.AB <= LDS_MAX and lds_b + NBB * self.BB <= LDS_MAX

    def c_setup(self):
        a, st = self.a, self.s_tmp
        a(f"s_lshr_b32 s{st}, s{self.s_wave}, 1")
        if self.st:
            a(f"s_xor_b32 s{st+2}, s{st}, s{self.s_wave}")
            a(f"s_and_b32 s{st+2}, s{st+2}, 1")
            a(f"s_lshl_b32 s{st+3}, s{st+2}, 5")
            a(f"s_lshl_b32 s{st+2}, s{st+2}, 11")
        L = V_LANE
        a(f"s_mul_i32 s{st}, s{st}, {self.mt*(1024 if self.ablk else 4096)}")
        if self.lds_a:
            a(f"s_add_u32 s{st}, s{st}, {self.lds_a}")
        if self.ablk:
            va = self.va
            a(f"""
            v_lshrrev_b32 v{va+1}, 5, v{L}
            v_bfe_u32 v{va+2}, v{L}, 3, 1
            v_xor_b32 v{va+1}, v{va+1}, v{va+2}
            v_and_b32 v{va}, 31, v{L}
            v_lshlrev_b32 v{va}, 5, v{va}
            v_lshl_add_u32 v{va}, v{va+1}, 4, v{va}
            v_add_u32 v{va}, s{st}, v{va}
            """)
        else:
            a(f"v_add_u32 v{self.va}, s{st}, v{V_AOFF}")
            if self.st:
                a(f"v_xor_b32 v{self.va}, s{st+3}, v{self.va}")
            for ks in range(1, 4):
                a(f"v_xor_b32 v{self.va+ks}, {ks*32}, v{self.va}")
        if self.bblk:
            vb = self.vb
            a(f"""
            s_and_b32 s{st}, s{self.s_wave}, 1
            s_mul_i32 s{st}, s{st}, {self.nt*2*PLS}
            s_add_u32 s{st}, s{st}, {self.lds_b}
            v_lshrrev_b32 v{vb}, 7, v{V_BOFF}
            v_lshlrev_b32 v{vb}, 5, v{vb}
            v_and_b32 v{vb+1}, 31, v{V_BOFF}
            v_add3_u32 v{vb}, v{vb}, v{vb+1}, s{st}
            v_bfe_u32 v{vb+1}, v{L}, 4, 1
            v_mul_u32_u24 v{vb+1}, {PLS}, v{vb+1}
            v_add_u32 v{vb}, v{vb}, v{vb+1}
            """)
        for j in range(0 if self.bblk else self.nt):
            a(f"s_and_b32 s{st}, s{self.s_wave}, 1")
            if not self.jmaj:
                a(f"s_mul_i32 s{st}, s{st}, {self.nt}")
            if j:
                a(f"s_add_u32 s{st}, s{st}, {2*j if self.jmaj else j}")
            a(f"s_and_b32 s{st+1}, s{st}, 1")
            a(f"s_lshl_b32 s{st+1}, s{st+1}, 6")
            a(f"s_lshr_b32 s{st}, s{st}, 1")
            a(f"s_lshl_b32 s{st}, s{st}, 12")
            a(f"s_add_u32 s{st}, s{st}, {self.lds_b}")
            if self.st:
                a(f"s_add_u32 s{st}, s{st}, s{st+2}")
            a(f"v_xor_b32 v{self.vb+j}, s{st+1}, v{V_BOFF}")
            a(f"v_add_u32 v{self.vb+j}, s{st}, v{self.vb+j}")
            if self.st:
                a(f"v_xor_b32 v{self.st['vb1']+j}, 2048, v{self.vb+j}")
        if self.st:
            for r in self.st["rows"]:
                a(f"v_mov_b32 v{r}, 0")
                a(f"v_mov_b32 v{r+1}, 0")
            for r in range(self.st["cols"], self.st["cols"] + 4 * self.nt):
                a(f"v_mov_b32 v{r}, 0")
            sel = self.st["sel"]
            a(f"""
            v_bfe_u32 v{sel}, v{L}, 4, 1
            v_xor_b32 v{sel}, v{sel}, v{L}
            v_and_b32 v{sel}, 1, v{sel}
            v_add_u32 v{sel}, -1, v{sel}
            v_and_b32 v{sel}, 0x3f803f80, v{sel}
            v_mov_b32 v{sel+1}, v{sel}
            v_mov_b32 v{sel+2}, v{sel}
            v_mov_b32 v{sel+3}, v{sel}
            """)

    def st_mfma(self, d, ksl):
        if not self.st:
            return []
        fa, fb = self._regs(d, ksl)
        sel = self.st["sel"]
        return [f"v_mfma_f32_16x16x32_bf16 v[{self.st['cols']+4*j}:{self.st['cols']+4*j+3}], v[{fb+4*j}:{fb+4*j+3}], v[{sel}:{sel+3}], v[{self.st['cols']+4*j}:{self.st['cols']+4*j+3}]"
                for j in range(self.nt) if (j & 1) == ksl]

    def st_valu(self, d, ksl):
        if not self.st:
            return []
        fa, fb = self._regs(d, ksl)
        t0, t1 = self.st["tmp"]
        out = []
        for i in range(self.mt):
            if ((i + 1) & 1) == ksl:
                r = self.st["rows"][i]
                for q in range(4):
                    x = fa + 4 * i + q
                    out += [f"v_lshlrev_b32 v{t0}, 16, v{x}", f"v_and_b32 v{t1}, 0xffff0000, v{x}",
                            f"v_add_f32 v{r}, v{r}, v{t0}", f"v_fmac_f32 v{r+1}, v{t0}, v{t0}",
                            f"v_add_f32 v{r}, v{r}, v{t1}", f"v_fmac_f32 v{r+1}, v{t1}, v{t1}"]
        return out

    def _regs(self, d, ksl):
        if self.G == 2:
            base = self.fr + (d & 1) * self.FS
            return base + ksl * self.mt * 4, base + 8 * self.mt + ksl * self.nt * 4
        base = self.fr + ksl * self.FS
        return base, base + 4 * self.mt

    def reads(self, d, ksl):
        sa, sb = (d >> 1) % self.NA, d % self.NBB
        fa, fb = self._regs(d, ksl)
        ra = [f"ds_read_b128 v[{fa+4*i}:{fa+4*i+3}], v{self.va + 2*(d&1) + ksl} offset:{sa*self.AB + i*4096}" for i in range(self.mt)]
        if self.ablk:
            ra = [f"ds_read_b128 v[{fa+4*i}:{fa+4*i+3}], v{self.va} offset:{sa*self.AB + (2*(d&1)+ksl)*self.BM*32 + i*1024}" for i in range(self.mt)]
        if self.bblk:
            rb = [f"ds_read_b64_tr_b16 v[{fb+4*j+2*t}:{fb+4*j+2*t+1}], v{self.vb} offset:{sb*self.BB + j*2*PLS + (16*ksl+4*t)*32}"
                  for j in range(self.nt) for t in range(2)]
        elif self.st:
            vb = self.st["vb1"] if ksl else self.vb
            rb = [f"ds_read_b64_tr_b16 v[{fb+4*j+2*t}:{fb+4*j+2*t+1}], v{vb+j} offset:{sb*self.BB + 4*t*128}"
                  for j in range(self.nt) for t in range(2)]
        else:
            rb = [f"ds_read_b64_tr_b16 v[{fb+4*j+2*t}:{fb+4*j+2*t+1}], v{self.vb+j} offset:{sb*self.BB + (16*ksl+4*t)*128}"
                  for j in range(self.nt) for t in range(2)]
        return [ra[0]] + rb[:2] + ra[1:] + rb[2:]

    def mfmas(self, d, ksl):
        fa, fb = self._regs(d, ksl)
        out = []
        for j in range(self.nt):
            for i in range(self.mt):
                dd = self.acc + (j * self.mt + i) * 16
                out.append(f"v_mfma_f32_32x32x16_bf16 v[{dd}:{dd+15}], v[{fb+4*j}:{fb+4*j+3}], v[{fa+4*i}:{fa+4*i+3}], v[{dd}:{dd+15}]")
        return out

    def zero_acc(self):
        for r in range(self.acc, self.acc + self.mt * self.nt * 16):
            self.a(f"v_mov_b32 v{r}, 0")

    def _loop(self, n, step, tag):
        a, P = self.a, self.period
        if n <= 0:
            return
        if n <= P:
            for d in range(n):
                step(d)
            return
        iters = (n + P - 1) // P
        uex = (n - 1) % P
        a(f"s_mov_b32 s{self.s_it}, 0")
        a(f"{self.name}_{tag}_LOOP:")
        for u in range(P):
            step(u)
            if u == uex:
                a(f"s_add_u32 s{self.s_it}, s{self.s_it}, 1")
                a(f"s_cmp_lt_u32 s{self.s_it}, {iters}")
                if u == P - 1:
                    a(f"s_cbranch_scc1 {self.name}_{tag}_LOOP")
                else:
                    a(f"s_cbranch_scc0 {self.name}_{tag}_DONE")
        if uex != P - 1:
            a(f"s_branch {self.name}_{tag}_LOOP")
            a(f"{self.name}_{tag}_DONE:")

    def c_run(self, per=4, after_first=None):
        a = self.a
        a("s_barrier")
        if after_first:
            after_first()
        prof = self.name in os.environ.get("PROF", "").split(",")
        def tick(acc):
            if prof:
                a("s_memtime s[0:1]")
                a("s_waitcnt lgkmcnt(0)")
                if acc is not None:
                    a("s_sub_u32 s11, s0, s11")
                    a(f"s_add_u32 s{acc}, s{acc}, s11")
                a("s_mov_b32 s11, s0")
        if prof:
            a("s_mov_b32 s64, 0\ns_mov_b32 s65, 0\ns_mov_b32 s10, 0")
        tick(None)
        mt, nt = self.mt, self.nt
        def rkeys(d, ksl):
            ka = [("a", d, ksl, i) for i in range(mt)]
            kb = [("b", d, ksl, j) for j in range(nt) for t in range(2)]
            return list(zip([ka[0]] + kb[:2] + ka[1:] + kb[2:], self.reads(d, ksl)))
        def mitems(d, ksl):
            out = [([("a", d, ksl, i), ("b", d, ksl, j)], m) for (j, i), m in
                   zip([(j, i) for j in range(nt) for i in range(mt)], self.mfmas(d, ksl))]
            out += [([("b", d, ksl, j)], m) for j, m in zip([j for j in range(nt) if (j & 1) == ksl], self.st_mfma(d, ksl))]
            return out
        def vitems(d, ksl):
            ii = [i for i in range(mt) if ((i + 1) & 1) == ksl]
            return [([("a", d, ksl, ii[0])], v) for v in self.st_valu(d, ksl)]
        issued, done = [], [-1]
        def R(x):
            issued.append(x[0]); a(x[1])
        def X(x):
            idx = max(max(p for p, k in enumerate(issued) if k == n) for n in x[0])
            if idx > done[0]:
                n = min(len(issued) - 1 - idx, 15)
                a(f"s_waitcnt lgkmcnt({n})")
                done[0] = len(issued) - 1 - n
            a(x[1])
        def BAR():
            if done[0] < len(issued) - 1:
                a("s_waitcnt lgkmcnt(0)")
                done[0] = len(issued) - 1
            tick(64)
            a("s_barrier")
            tick(65)
        def spread(ms, rs, vs, lead=0):
            rs, vs = list(rs), list(vs)
            for _ in range(lead):
                R(rs.pop(0))
            n = len(ms)
            for k, m in enumerate(ms):
                X(m)
                for _ in range(-(-len(rs) // (n - k)) + (1 if k == 0 and not lead and len(rs) % n else 0)):
                    if rs:
                        R(rs.pop(0))
                for _ in range(-(-len(vs) // (n - k))):
                    X(vs.pop(0))
        def start(pre):
            del issued[:]
            issued.extend(k for k, _ in pre)
            done[0] = -1
        if self.G == 2:
            assert self.SS
            rd2 = lambda d: rkeys(d, 0) + rkeys(d, 1)
            mf2 = lambda d: mitems(d, 0) + mitems(d, 1)
            for r in rd2(0):
                R(r)
            def step(u):
                start(rd2(2 * u))
                spread(mf2(2 * u), rd2(2 * u + 1), [])
                ms = mf2(2 * u + 1)
                h = len(ms) // 2
                for m in ms[:h]:
                    X(m)
                BAR()
                spread(ms[h:], rd2(2 * u + 2), [], lead=3)
            self._loop(self.ND // 2, step, "C")
        else:
            for r in rkeys(0, 0):
                R(r)
            def step(d):
                start(rkeys(d, 0))
                spread(mitems(d, 0), rkeys(d, 1), vitems(d, 0))
                ms = mitems(d, 1)
                spread(ms[:2], [], vitems(d, 1))
                BAR()
                spread(ms[2:], rkeys(d + 1, 0), [], lead=3)
            self._loop(self.ND, step, "C")

    def l_setup_a(self, vda, lda, vt):
        a, st, qa = self.a, self.s_tmp, self.qa
        L = V_LANE
        assert (lda is None) == self.ablk
        a(f"s_mul_i32 s{self.s_ma}, s{self.s_lw}, {qa*1024}")
        if lda:
            self.vda = [vda + i for i in range(qa)]
            a(f"s_mul_i32 s{st}, s{self.s_lw}, {8*qa*lda}")
            a(f"s_mov_b32 s{st+1}, {lda}")
            a(f"v_lshlrev_b32 v{vt}, 4, v{V_CHA}")
            a(f"v_mad_u32_u24 v{vt}, v{V_ROW}, s{st+1}, v{vt}")
            a(f"v_add_u32 v{vt}, s{st}, v{vt}")
            a(f"v_xor_b32 v{vt+1}, 64, v{vt}")
            self.ka_step = 128
            assert qa % 2 == 0
            for i in range(qa):
                a(f"v_add_u32 v{vda+i}, {8*i*lda - i*1024}, v{vt + (i & 1)}")
        else:
            self.vda = [vda] * qa
            a(f"""
            s_lshl_b32 s{st}, s{self.s_lw}, 16
            v_bfe_u32 v{vt}, v{L}, 4, 1
            v_xor_b32 v{vt}, v{vt}, v{L}
            v_lshlrev_b32 v{vt}, 4, v{vt}
            v_add_u32 v{vda}, s{st}, v{vt}
            """)
            self.ka_step = 4 * PL

    def l_setup_b(self, vdb, ldb, vt, pstride=128):
        a, st, qb = self.a, self.s_tmp, self.qb
        L = V_LANE
        self.vdb = vdb
        assert (ldb is None) == self.bblk
        if not ldb:
            self.b_imm = PLS
            self.kb_step = 32 * 32
            a(f"s_mul_i32 s{self.s_mb}, s{self.s_lw}, {qb*PLS}")
            a(f"s_mul_i32 s{st}, s{self.s_lw}, {qb*PL}")
            a(f"v_lshlrev_b32 v{vt}, 4, v{L}")
            a(f"v_add_u32 v{vdb}, s{st}, v{vt}")
            for i in range(1, qb):
                a(f"v_add_u32 v{vdb+i}, {i*(PL-PLS)}, v{vdb}")
            return
        a(f"s_mul_i32 s{self.s_mb}, s{self.s_lw}, {qb*1024}")
        a(f"s_mov_b32 s{st+1}, {ldb}")
        a(f"v_lshlrev_b32 v{vt}, 4, v{V_CHB}")
        a(f"v_mad_u32_u24 v{vt}, v{V_ROW}, s{st+1}, v{vt}")
        eb, pb = 8 * ldb, pstride
        self.kb_step = 32 * ldb
        self.b_imm = 0 if qb == 3 else 1024
        for i in range(qb):
            a(f"s_mul_i32 s{st}, s{self.s_lw}, {qb}")
            if i:
                a(f"s_add_u32 s{st}, s{st}, {i}")
            a(f"s_and_b32 s{st+1}, s{st}, 3")
            a(f"s_mul_i32 s{st+1}, s{st+1}, {eb}")
            a(f"s_lshr_b32 s{st}, s{st}, 2")
            a(f"s_mul_i32 s{st}, s{st}, {pb}")
            a(f"s_add_u32 s{st}, s{st}, s{st+1}")
            if i * self.b_imm:
                a(f"s_sub_u32 s{st}, s{st}, {i * self.b_imm}")
            a(f"v_add_u32 v{vdb+i}, s{st}, v{vt}")

    def l_bind(self, srdA, srdB, s_ka, s_kb):
        self.srdA, self.srdB, self.s_ka, self.s_kb = srdA, srdB, s_ka, s_kb

    def l_rot(self, s_rot, win=0):
        a, st = self.a, self.s_tmp
        self.win = win
        if win:
            a(f"""
            s_mov_b32 s{S_KA0}, s{self.s_ka}
            s_mov_b32 s{S_KB0}, s{self.s_kb}
            s_mov_b32 s{S_KA1}, 0
            s_mov_b32 s{S_KB1}, 0
            s_mov_b32 s{S_ROT}, s{s_rot}
            """)
        else:
            a(f"""
            s_mov_b32 s{S_KA0}, s{self.s_ka}
            s_add_u32 s{S_KA1}, s{self.s_ka}, {(self.ND//2)*self.ka_step}
            s_mov_b32 s{S_KB0}, s{self.s_kb}
            s_add_u32 s{S_KB1}, s{self.s_kb}, {self.ND*self.kb_step}
            """)
        a(f"""
        s_mul_i32 s{st+1}, s{s_rot}, {self.ka_step}
        s_add_u32 s{self.s_ka}, s{self.s_ka}, s{st+1}
        s_mul_i32 s{st+1}, s{s_rot}, {2*self.kb_step}
        s_add_u32 s{self.s_kb}, s{self.s_kb}, s{st+1}
        """)

    def _adv(self, k, k0, k1, step, mul):
        a = self.a
        if self.win:
            w = self.win * mul - 1
            a(f"s_add_u32 s{k1}, s{k1}, 1")
            if mul == 2:
                a(f"s_lshl1_add_u32 s{k}, s{S_ROT}, s{k1}")
            else:
                a(f"s_add_u32 s{k}, s{S_ROT}, s{k1}")
            a(f"s_and_b32 s{k}, s{k}, {w}")
            a(f"s_andn2_b32 s{S_RT}, s{k1}, {w}")
            a(f"s_or_b32 s{k}, s{k}, s{S_RT}")
            a(f"s_mul_i32 s{k}, s{k}, {step}")
            a(f"s_add_u32 s{k}, s{k}, s{k0}")
        else:
            a(f"s_add_u32 s{k}, s{k}, {step}")
            a(f"s_cmp_eq_u32 s{k}, s{k1}")
            a(f"s_cselect_b32 s{k}, s{k0}, s{k}")

    def issue_a(self, u):
        a = self.a
        a(f"s_add_u32 m0, s{self.s_ma}, {self.lds_a + (u % self.NA) * self.AB}")
        for i in range(self.qa):
            a(f"buffer_load_dwordx4 v{self.vda[i]}, s[{self.srdA}:{self.srdA+3}], s{self.s_ka} offen offset:{i*1024} lds")
        self._adv(self.s_ka, S_KA0, S_KA1, self.ka_step, 1)

    def issue_b(self, d):
        a = self.a
        for i in range(self.qb):
            if i == 0 or not self.b_imm:
                a(f"s_add_u32 m0, s{self.s_mb}, {self.lds_b + (d % self.NBB) * self.BB + i*1024}")
            a(f"buffer_load_dwordx4 v{self.vdb+i}, s[{self.srdB}:{self.srdB+3}], s{self.s_kb} offen offset:{i*self.b_imm} lds")
        self._adv(self.s_kb, S_KB0, S_KB1, self.kb_step, 2)

    def pro_order(self, which="ab"):
        out = []
        nau, nbu = min(self.NA, self.ND // 2), min(self.NBB, self.ND)
        for d in range(max(2 * nau, nbu)):
            if d % 2 == 0 and d // 2 < nau and "a" in which:
                out.append(("a", d // 2))
            if d < nbu and "b" in which:
                out.append(("b", d))
        return out

    def l_issue(self, lst):
        for k, i in lst:
            (self.issue_a if k == "a" else self.issue_b)(i)

    def l_run(self, order, work=None, late=()):
        a, ND = self.a, self.ND
        seq = []
        def add(k, i):
            seq.extend([(k, i)] * (self.qa if k == "a" else self.qb))
        for k, i in order:
            add(k, i)
        NS = ND // 2 if self.SS else ND
        def cnt(d):
            need = [("a", d), ("b", 2 * d), ("b", 2 * d + 1)] if self.SS else [("a", d >> 1), ("b", d)]
            idx = max(max(p for p, t in enumerate(seq) if t == n) for n in need)
            return len(seq) - 1 - idx
        waits = {-1: cnt(0)}
        for k, i in late:
            add(k, i)
        plan = {}
        for d in range(NS):
            waits[d] = cnt(d + 1) if d + 1 < NS else None
            pl = []
            if self.SS:
                if d + self.NA < NS:
                    pl.append(("a", d + self.NA))
                if 2 * d + self.NBB < ND:
                    pl += [("b", 2 * d + self.NBB), ("b", 2 * d + 1 + self.NBB)]
            else:
                if d % 2 == 1 and (d >> 1) + self.NA < ND // 2:
                    pl.append(("a", (d >> 1) + self.NA))
                if d + self.NBB < ND:
                    pl.append(("b", d + self.NBB))
            plan[d] = pl
            for k, i in pl:
                add(k, i)
        def full(d):
            return len(plan[d]) == (3 if self.SS else 2 if d % 2 else 1)
        nmain = 0
        while nmain < NS and full(nmain):
            nmain += 1
        P = self.period
        wmin = {}
        for d in range(nmain):
            wmin[d % P] = min(wmin.get(d % P, 63), waits[d], 63)
        a(f"s_waitcnt vmcnt({min(waits[-1], 63)})")
        a("s_barrier")
        self.l_issue(late)
        prof = self.name in os.environ.get("PROF", "").split(",")
        trace = self.name in os.environ.get("TRACE", "").split(",")
        def tick(acc):
            if prof:
                a("s_memtime s[0:1]")
                a("s_waitcnt lgkmcnt(0)")
                if acc is not None:
                    a("s_sub_u32 s11, s0, s11")
                    a(f"s_add_u32 s{acc}, s{acc}, s11")
                a("s_mov_b32 s11, s0")
            if trace:
                a("s_memrealtime s[0:1]")
                a("s_waitcnt lgkmcnt(0)")
                a(f"v_cmp_eq_u32 vcc, s10, v{V_LANE}")
                a("v_mov_b32 v126, s0")
                a("v_cndmask_b32 v127, v127, v126, vcc")
                a("s_add_u32 s10, s10, 1")
        if prof:
            a("s_mov_b32 s64, 0\ns_mov_b32 s65, 0\ns_mov_b32 s10, 0")
        if trace:
            a("s_mov_b32 s10, 0\nv_mov_b32 v127, 0")
        tick(None)
        def step(u):
            a(f"s_waitcnt vmcnt({wmin[u]})")
            tick(64)
            a("s_barrier")
            tick(65)
            self.l_issue(plan[u])
            tick(10)
        self._loop(nmain, step, "L")
        for d in range(nmain, NS):
            if waits[d] is not None:
                a(f"s_waitcnt vmcnt({min(waits[d], 63)})")
            if trace: tick(64)
            a("s_barrier")
            if trace: tick(65)
            self.l_issue(plan[d])
            if trace: tick(10)
        if trace:
            a(f"""
            s_lshl_b32 s0, s2, 3
            s_add_u32 s0, s0, s{self.s_wave}
            s_lshl_b32 s0, s0, 8
            s_add_u32 s0, s0, {WS_STAMP + (1 << 20)}
            v_lshlrev_b32 v126, 2, v{V_LANE}
            buffer_store_dword v127, v126, s[28:31], s0 offen
            """)
```

```python
from common import *
from g2 import *
import sys

TOFF = float(os.environ.get("TOFF", "100"))
LLIM = 2.0 ** 110
S_X, S_WQKV, S_WO, S_WIN, S_WSP, S_BSP, S_WOUT, S_OUT, S_DBG, S_WS = 4, 6, 8, 12, 14, 16, 18, 20, 22, 24
R_WS, R_A, R_B, R_M = 28, 32, 36, 40
S_IDX, S_WAVE, S_P0, S_P1, S_P2, S_P3, S_LW, S_KA, S_KB, S_IT, S_OK, S_T = 3, 44, 45, 46, 47, 48, 49, 50, 51, 52, 53, 54
S_MA, S_MB = 26, 27
L = V_LANE
LDS_V, LDS_K, LDS_ONES, LDS_VOTE = 0, 32768, 65536, 65536 + 8704
LDS_STA = 74752
LDS_STB, LDS_LNS, LDS_LNQ = 65536, 32768, 36864
S_ONE = 63
POLL_MAX = 20000
PF = int(os.environ.get('PF', '0'))
LDS_DUMMY = 79872
HP = int(os.environ.get('HP', '3'))
NA1 = int(os.environ.get('NA1', '2'))
ROT = int(os.environ.get('ROT', '1'))
GK = dict(s_wave=S_WAVE, s_tmp=S_T, s_it=S_IT, s_lw=S_LW, s_ma=S_MA, s_mb=S_MB)

def poll(a, lbl, rsrd, voff, soff, expect, vt, inv=True):
    a(f"""
    s_mov_b32 s{S_T+8}, 0
    {lbl}_P:
    buffer_load_dword v{vt}, v{voff}, s[{rsrd}:{rsrd+3}], {soff} offen sc1
    s_waitcnt vmcnt(0)
    v_cmp_ne_u32 vcc, {expect}, v{vt}
    s_add_u32 s{S_T+8}, s{S_T+8}, 1
    s_cmp_gt_u32 s{S_T+8}, {POLL_MAX}
    s_cbranch_scc1 {lbl}_X
    s_cbranch_vccz {lbl}_X
    s_sleep 1
    s_branch {lbl}_P
    {lbl}_X:
    """)
    if inv and os.environ.get('INV', '0') == '1':
        a("buffer_inv sc1")
        a("s_waitcnt vmcnt(0)")

def signal(a, s_cnt, vt):
    a(f"""
    s_lshl_b32 s{S_T+8}, s{s_cnt}, 8
    s_add_u32 s{S_T+8}, s{S_T+8}, {WS_CNT}
    v_mov_b32 v{vt}, 1
    v_mov_b32 v{vt+1}, 0
    s_mov_b64 exec, 1
    buffer_atomic_add v{vt}, v{vt+1}, s[{R_WS}:{R_WS+3}], s{S_T+8} offen sc1
    s_mov_b64 exec, -1
    """)

VZ0, VZF = 6, 7

def z0_issue(a):
    srd(a, R_M, S_DBG, S_DBG + 1, 256)
    a(f"buffer_load_dword v{VZF}, v{VZ0}, s[{R_M}:{R_M+3}], 0 offen sc1")

def z0_check(a, lbl):
    a(f"""
    v_cmp_ne_u32 vcc, 1, v{VZF}
    s_nop 4
    s_cbranch_vccz {lbl}_ZOK
    """)
    poll(a, f"{lbl}_Z", R_M, VZ0, 0, 1, VZF, inv=False)
    a(f"{lbl}_ZOK:")

def interleave(a, lists):
    n = max(len(l) for l in lists)
    for q in range(n):
        for l in lists:
            if q < len(l):
                a(l[q])

def bf16r_l(dst, src):
    return [f"v_cvt_pk_bf16_f32 v{dst}, v{src}, v{src}", f"v_lshlrev_b32 v{dst}, 16, v{dst}"]

def rank1(a, g, lds_st, RD, TA, PR, CO, TC):
    mt, nt = g.mt, g.nt
    FB = g.fr
    FA = g.fr + 4 * mt
    RSZ = g.BM * 32
    rows, cols = g.st["rows"], g.st["cols"]
    a(f"""
    s_lshr_b32 s{S_T}, s{S_WAVE}, 1
    s_and_b32 s{S_T+1}, s{S_WAVE}, 1
    s_mul_i32 s{S_T+2}, s{S_T}, {mt*1024}
    s_add_u32 s{S_T+2}, s{S_T+2}, {lds_st}
    s_lshl_b32 s{S_T+3}, s{S_T+1}, 4
    s_mul_i32 s{S_T+1}, s{S_T+1}, {nt*256}
    s_add_u32 s{S_T+1}, s{S_T+1}, {lds_st + RSZ}
    s_lshl_b32 s{S_T}, s{S_T}, 7
    s_add_u32 s{S_T}, s{S_T}, s{S_T+1}
    v_and_b32 v{TA}, 31, v{L}
    v_lshlrev_b32 v{TA}, 5, v{TA}
    v_add_u32 v{TA}, s{S_T+2}, v{TA}
    v_lshrrev_b32 v{TA+2}, 5, v{L}
    v_lshl_add_u32 v{TA+2}, v{TA+2}, 3, v{TA}
    v_add_u32 v{TA+2}, s{S_T+3}, v{TA+2}
    """)
    for i in range(mt):
        a(f"ds_write_b64 v{TA+2}, v[{rows[i]}:{rows[i]+1}] offset:{i*1024}")
    a(f"""
    v_and_b32 v{TA+1}, 1, v{L}
    v_lshlrev_b32 v{TA+1}, 6, v{TA+1}
    v_and_b32 v{TA+2}, 48, v{L}
    v_add3_u32 v{TA+1}, v{TA+1}, v{TA+2}, s{S_T}
    s_mov_b32 exec_lo, 0x30003
    s_mov_b32 exec_hi, 0x30003
    """)
    for j in range(nt):
        a(f"ds_write_b128 v{TA+1}, v[{cols+4*j}:{cols+4*j+3}] offset:{j*256}")
    a(f"""
    s_mov_b64 exec, -1
    s_waitcnt lgkmcnt(0)
    v_lshlrev_b32 v{TA+1}, 2, v{L}
    v_add_u32 v{TA+1}, s{S_T+1}, v{TA+1}
    s_barrier
    """)
    for i in range(mt):
        a(f"ds_read_b128 v[{PR+8*i}:{PR+8*i+3}], v{TA} offset:{i*1024}")
        a(f"ds_read_b128 v[{PR+8*i+4}:{PR+8*i+7}], v{TA} offset:{i*1024+16}")
    for j in range(nt):
        a(f"ds_read_b32 v{CO+j}, v{TA+1} offset:{j*256}")
    for i in range(mt):
        a(f"v_mov_b32 v{FB+4*i+2}, 0")
        a(f"v_mov_b32 v{FB+4*i+3}, 0")
    for j in range(nt):
        a(f"v_mov_b32 v{FA+4*j+2}, 0")
        a(f"v_mov_b32 v{FA+4*j+3}, 0")
    a("s_waitcnt lgkmcnt(0)")
    l1, l2 = [], []
    for i in range(mt):
        c, b, q = PR + 8 * i, FB + 4 * i, PR + 8 * i + 1
        l1.append([f"v_add_f32 v{c}, v{c}, v{c+2}",
                   f"v_add_f32 v{c+4}, v{c+4}, v{c+6}",
                   f"v_add_f32 v{c}, v{c}, v{c+4}",
                   f"v_mul_f32 v{c}, {f32(1.0/512)}, v{c}",
                   f"v_cvt_pk_bf16_f32 v{b}, -v{c}, -v{c}",
                   f"v_cvt_pk_bf16_f32 v{b+1}, -v{c}, -v{c}"])
        l2.append([f"v_add_f32 v{q}, v{q}, v{q+2}",
                   f"v_add_f32 v{q+4}, v{q+4}, v{q+6}",
                   f"v_add_f32 v{q}, v{q}, v{q+4}",
                   f"v_mul_f32 v{q}, {f32(1.0/512)}, v{q}",
                   f"v_fma_f32 v{q}, -v{c}, v{c}, v{q}",
                   f"v_max_f32 v{q}, 0, v{q}"] + bf16r_l(q, q) + [f"v_add_f32 v{q}, {f32(1e-5)}, v{q}"] + bf16r_l(q, q) +
                  [f"v_sqrt_f32 v{q}, v{q}"] + bf16r_l(q, q) + [f"v_rcp_f32 v{RD+i}, v{q}"])
    for j in range(nt):
        c, d, C = CO + j, FA + 4 * j, TC + 3 * j
        l1.append([f"v_cvt_pk_bf16_f32 v{C}, v{c}, v{c}",
                   f"v_lshlrev_b32 v{C}, 16, v{C}",
                   f"v_sub_f32 v{C+1}, v{c}, v{C}",
                   f"v_cvt_pk_bf16_f32 v{d}, v{C}, v{C+1}",
                   f"v_and_b32 v{C+2}, 0xffff0000, v{d}",
                   f"v_sub_f32 v{C+1}, v{C+1}, v{C+2}",
                   f"v_cvt_pk_bf16_f32 v{d+1}, v{C+1}, 0"])
    interleave(a, l1)
    for j in range(nt):
        for i in range(mt):
            dd = g.acc + (j * mt + i) * 16
            a(f"v_mfma_f32_32x32x16_bf16 v[{dd}:{dd+15}], v[{FA+4*j}:{FA+4*j+3}], v[{FB+4*i}:{FB+4*i+3}], v[{dd}:{dd+15}]")
    interleave(a, l2)

def gA1(a):
    return G2(a, "A1", BM=64, NT=6, mt=1, nt=3, NA=NA1, NBB=4, ND=16, lds_a=0, lds_b=NA1*8192, acc=16, fr=64, va=4, vb=8,
              G=1, st=dict(vb1=11, rows=[112], cols=96, sel=108, tmp=(114, 115)), **GK)

def a_params(a):
    a(f"""
    s_bfe_u32 s{S_P0}, s{S_IDX}, 0x20001
    s_lshl_b32 s{S_P0}, s{S_P0}, 3
    s_bfe_u32 s{S_T}, s{S_IDX}, 0x30003
    s_add_u32 s{S_P0}, s{S_P0}, s{S_T}
    s_and_b32 s{S_P1}, s{S_IDX}, 1
    s_lshl_b32 s{S_P1}, s{S_P1}, 2
    s_lshr_b32 s{S_T}, s{S_IDX}, 6
    s_add_u32 s{S_P1}, s{S_P1}, s{S_T}
    s_and_b32 s{S_P2}, s{S_IDX}, 7
    s_lshl_b32 s{S_P2}, s{S_P2}, 2
    s_bfe_u32 s{S_T}, s{S_IDX}, 0x20003
    s_add_u32 s{S_P2}, s{S_P2}, s{S_T}
    s_lshr_b32 s{S_P3}, s{S_IDX}, 5
    """)

def a_loader(a):
    g = gA1(a)
    a(f"s_setprio {os.environ.get('PAL', '3')}")
    loader_lane_setup(a, 60)
    g.l_setup_a(8, 1024, 60)
    g.l_setup_b(12, 3072, 60, pstride=1024)
    g.l_bind(R_A, R_B, S_KA, S_KB)
    a(f"""
    v_mov_b32 v{VZ0}, 0
    s_lshl_b32 s{S_KA}, s{S_P0}, 16
    s_lshl_b32 s{S_KB}, s{S_P1}, 7
    s_lshl1_add_u32 s{S_T}, s{S_P1}, s{S_P0}
    s_and_b32 s{S_T}, s{S_T}, {7*ROT}
    """)
    g.l_rot(S_T)
    a("s_waitcnt lgkmcnt(0)")
    srd(a, R_A, S_X, S_X + 1, 2048 * 1024)
    srd(a, R_B, S_WQKV, S_WQKV + 1, 512 * 3072)
    order = g.pro_order()
    g.l_issue(order[:HP])
    srd(a, R_WS, S_WS, S_WS + 1, WS_END)
    stamp(a, 1)
    g.l_run(order[:HP], late=order[HP:])
    z0_issue(a)
    a(f"""
    v_mov_b32 v64, 0x3f80
    v_mov_b32 v65, 0
    v_mov_b32 v66, 0
    v_mov_b32 v67, 0
    v_lshlrev_b32 v68, 4, v0
    v_add_u32 v68, {LDS_ONES - 4096}, v68
    ds_write_b128 v68, v[64:67]
    ds_write_b128 v68, v[64:67] offset:4096
    ds_write_b128 v68, v[64:67] offset:4608
    s_waitcnt lgkmcnt(0)
    """)
    a("s_barrier")
    stamp(a, 2)
    a(f"""
    v_and_b32 v62, 1, v{L}
    v_lshlrev_b32 v62, 8, v62
    s_lshl_b32 s{S_T+1}, s{S_P1}, 1
    s_and_b32 s{S_T}, s{S_P0}, 1
    s_add_u32 s{S_T}, s{S_T}, s{S_T+1}
    s_and_b32 s{S_T+1}, s{S_IDX}, 7
    s_lshl_b32 s{S_T+1}, s{S_T+1}, 9
    s_add_u32 s{S_T+1}, s{S_T+1}, {WS_CNT + C_S1*256}
    s_waitcnt vmcnt(0)
    s_barrier
    s_cmp_eq_u32 s{S_LW}, 0
    s_cbranch_scc0 AT_START
    """)
    stamp(a, 3)
    z0_check(a, "AL")
    signal(a, S_T, 60)
    poll(a, "AL_S1", R_WS, 62, f"s{S_T+1}", 16, 60)
    a("s_branch AT_START")

def a_compute(a):
    g = gA1(a)
    T = 80
    a(f"s_setprio {os.environ.get('PA1', '2')}")
    if PF:
        a(f"""
        v_lshlrev_b32 v{T+8}, 10, v{L}
        v_and_b32 v{T+9}, 15, v{L}
        v_mul_u32_u24 v{T+9}, 3072, v{T+9}
        v_lshrrev_b32 v{T+10}, 4, v{L}
        v_min_u32 v{T+10}, 2, v{T+10}
        v_lshl_add_u32 v{T+9}, v{T+10}, 10, v{T+9}
        s_lshl_b32 s{S_T}, s{S_P0}, 16
        s_lshl_b32 s{S_T+1}, s{S_WAVE}, 8
        s_add_u32 s{S_T}, s{S_T}, s{S_T+1}
        s_mul_i32 s{S_T+1}, s{S_P0}, {16*3072}
        s_lshl_b32 s{S_T+2}, s{S_P1}, 7
        s_add_u32 s{S_T+1}, s{S_T+1}, s{S_T+2}
        s_mov_b32 m0, {LDS_DUMMY}
        s_cmp_eq_u32 s{S_WAVE}, 3
        s_waitcnt lgkmcnt(0)
        s_cbranch_scc1 AC_PFW
        """)
        srd(a, R_A, S_X, S_X + 1, 2048 * 1024)
        for o in ([256, 384] if PF == 1 else [256, 320, 384, 448]):
            a(f"buffer_load_dword v{T+8}, s[{R_A}:{R_A+3}], s{S_T} offen offset:{o} lds")
        a("s_branch AC_PFD")
        a("AC_PFW:")
        srd(a, R_A, S_WQKV, S_WQKV + 1, 512 * 3072)
        for o in ([0] if PF == 1 else [0, 64]):
            a(f"buffer_load_dword v{T+9}, s[{R_A}:{R_A+3}], s{S_T+1} offen offset:{o} lds")
        a("AC_PFD:")
    compute_lane_setup(a, T + 8)
    g.c_setup()
    g.zero_acc()
    a("s_waitcnt lgkmcnt(0)")
    srd(a, R_WS, S_WS, S_WS + 1, WS_END)
    a(f"""
    s_or_b32 s{S_OK}, s{S_IDX}, s{S_WAVE}
    s_cmp_eq_u32 s{S_OK}, 0
    v_lshlrev_b32 v{T}, 8, v{L}
    v_mov_b32 v{T+1}, 0
    v_mov_b32 v{T+2}, 1
    s_cbranch_scc0 AC_NOZ
    s_mov_b32 s{S_T}, {WS_CNT}
    s_mov_b32 s{S_T+1}, {WS_CNT + 16384}
    buffer_store_dword v{T+1}, v{T}, s[{R_WS}:{R_WS+3}], s{S_T} offen sc1
    buffer_store_dword v{T+1}, v{T}, s[{R_WS}:{R_WS+3}], s{S_T+1} offen sc1
    AC_NOZ:
    """)
    srd(a, R_M, S_DBG, S_DBG + 1, 256)
    def flag():
        a(f"""
        s_cmp_eq_u32 s{S_OK}, 0
        s_cbranch_scc0 AC_NOZ2
        s_waitcnt vmcnt(0)
        s_mov_b64 exec, 1
        buffer_store_dword v{T+2}, v{T+1}, s[{R_M}:{R_M+3}], 0 offen sc1
        s_mov_b64 exec, -1
        AC_NOZ2:
        """)
    stamp(a, 1)
    g.c_run(per=7, after_first=flag)
    stamp(a, 2)
    RD = 14
    rank1(a, g, LDS_STA, RD, 108, 116, 96, 99)
    stamp(a, 3)
    a(f"""
    s_lshr_b32 s{S_T}, s{S_WAVE}, 1
    s_lshl_b32 s{S_T}, s{S_T}, 5
    s_lshl_b32 s{S_T+1}, s{S_P0}, 6
    s_add_u32 s{S_T}, s{S_T}, s{S_T+1}
    v_and_b32 v12, 31, v{L}
    v_add_u32 v12, s{S_T}, v12
    v_lshlrev_b32 v12, 5, v12
    v_lshrrev_b32 v13, 5, v{L}
    v_lshl_add_u32 v12, v13, 4, v12
    s_and_b32 s{S_T+1}, s{S_WAVE}, 1
    s_mul_i32 s{S_T+1}, s{S_T+1}, 3
    s_mov_b32 s{S_T+2}, {f32(QC)}
    s_mov_b32 s{S_T+3}, {f32(QC)}
    """)
    for j in range(3):
        d = g.acc + 16 * j
        o = 104 + 8 * j
        for p in range(8):
            r = d + 2 * p
            a(f"v_mul_f32 v{r}, v{r}, v{RD}")
            a(f"v_mul_f32 v{r+1}, v{r+1}, v{RD}")
            a(f"v_cvt_pk_bf16_f32 v{o+p}, v{r}, v{r+1}")
        a(f"""
        s_lshr_b32 s{S_T}, s{S_T+1}, 1
        s_lshl_b32 s{S_T}, s{S_T}, 3
        s_add_u32 s{S_T}, s{S_T}, s{S_P1}
        s_lshl_b32 s{S_T}, s{S_T}, 1
        s_and_b32 s{S_T+4}, s{S_T+1}, 1
        s_add_u32 s{S_T}, s{S_T}, s{S_T+4}
        s_lshl_b32 s{S_T+4}, s{S_T}, 17
        s_add_u32 s{S_T+5}, s{S_T+4}, 65536
        s_cmp_lt_u32 s{S_T}, 16
        s_cbranch_scc0 AC_NQ{j}
        """)
        for p in range(8):
            r = d + 2 * p
            a(f"v_lshlrev_b32 v{r}, 16, v{o+p}")
            a(f"v_and_b32 v{r+1}, 0xffff0000, v{o+p}")
            a(f"v_mul_f32 v{r}, s{S_T+2}, v{r}")
            a(f"v_mul_f32 v{r+1}, s{S_T+2}, v{r+1}")
            a(f"v_cvt_pk_bf16_f32 v{o+p}, v{r}, v{r+1}")
        a(f"""
        AC_NQ{j}:
        buffer_store_dwordx4 v[{o}:{o+3}], v12, s[{R_WS}:{R_WS+3}], s{S_T+4} offen sc1
        buffer_store_dwordx4 v[{o+4}:{o+7}], v12, s[{R_WS}:{R_WS+3}], s{S_T+5} offen sc1
        s_add_u32 s{S_T+1}, s{S_T+1}, 1
        """)
    a("s_waitcnt vmcnt(0)")
    a("s_barrier")
    attention(a)

def attention(a):
    S_C, S_MODE, S_M0 = S_IT, S_OK, S_MA
    VKA, VVA, VINC, VROW, VDK, VDV = 2, 3, 4, 5, 6, 7
    S_, P, O, C, Q, KF, VF, T = 16, 48, 56, 72, 88, 92, 100, 116
    a("AT_START:")
    a(f"""
    s_mov_b32 s{S_MODE}, 0
    v_and_b32 v{T}, 31, v{L}
    s_lshl_b32 s{S_T}, s{S_WAVE}, 5
    v_add_u32 v{T}, s{S_T}, v{T}
    v_lshlrev_b32 v{T}, 5, v{T}
    v_lshrrev_b32 v{T+1}, 5, v{L}
    v_lshl_add_u32 v{VROW}, v{T+1}, 4, v{T}
    v_lshrrev_b32 v{T}, 1, v{L}
    v_lshlrev_b32 v{T}, 5, v{T}
    v_bfe_u32 v{T+1}, v{L}, 4, 1
    v_xor_b32 v{T+1}, v{T+1}, v{L}
    v_and_b32 v{T+1}, 1, v{T+1}
    v_lshl_add_u32 v{VDK}, v{T+1}, 4, v{T}
    v_lshlrev_b32 v{VDV}, 4, v{L}
    v_add_u32 v{VDV}, {WS_V - WS_K}, v{VDV}
    s_lshl_b32 s{S_T+2}, s{S_P2}, 16
    s_lshl_b32 s{S_T+3}, s{S_P3}, 13
    s_add_u32 s{S_T+3}, s{S_T+3}, s{S_T+2}
    """)
    srd(a, R_A, S_WS, S_WS + 1, WS_END)
    a("s_barrier")
    a(f"s_setprio {os.environ.get('PAT', '0')}")
    stamp(a, 4)
    a(f"buffer_load_dwordx4 v[{Q}:{Q+3}], v{VROW}, s[{R_WS}:{R_WS+3}], s{S_T+3} offen")
    def dma_chunk():
        return [f"s_add_u32 m0, s{S_M0}, {LDS_K}",
                f"buffer_load_dwordx4 v{VDK}, s[{R_A}:{R_A+3}], s{S_KA} offen lds",
                f"s_add_u32 m0, s{S_M0}, {LDS_V}",
                f"buffer_load_dwordx4 v{VDV}, s[{R_A}:{R_A+3}], s{S_KA} offen lds",
                f"s_add_u32 s{S_KA}, s{S_KA}, 8192",
                f"s_add_u32 s{S_M0}, s{S_M0}, 8192",
                f"s_and_b32 s{S_M0}, s{S_M0}, 0x7fff"]
    a("AT_RESTART:")
    a(f"""
    s_lshl_b32 s{S_M0}, s{S_WAVE}, 10
    s_add_u32 s{S_KA}, s{S_T+2}, s{S_M0}
    s_add_u32 s{S_KA}, s{S_KA}, {WS_K}
    s_mov_b32 s{R_A+2}, {WS_END}
    """)
    for c in range(3):
        for ins in dma_chunk():
            a(ins)
    a(f"""
    v_and_b32 v{T}, 19, v{L}
    v_bfe_u32 v{T+1}, v{L}, 2, 1
    v_lshl_add_u32 v{T}, v{T+1}, 3, v{T}
    v_bfe_u32 v{T+2}, v{L}, 3, 1
    v_lshl_add_u32 v{T}, v{T+2}, 2, v{T}
    v_lshlrev_b32 v{T}, 5, v{T}
    v_lshrrev_b32 v{T+2}, 5, v{L}
    v_xor_b32 v{T+1}, v{T+1}, v{T+2}
    v_lshl_add_u32 v{VKA}, v{T+1}, 4, v{T}
    v_bfe_u32 v{T}, v{L}, 2, 2
    v_lshl_add_u32 v{T}, v{T+2}, 3, v{T}
    v_lshlrev_b32 v{T}, 5, v{T}
    v_and_b32 v{T+1}, 1, v{L}
    v_lshl_add_u32 v{T}, v{T+1}, 4, v{T}
    v_bfe_u32 v{T+1}, v{L}, 1, 1
    v_lshl_add_u32 v{T}, v{T+1}, 3, v{T}
    v_bfe_u32 v{T+1}, v{L}, 4, 1
    v_cmp_eq_u32 vcc, 1, v{T+1}
    v_add_u32 v{T+1}, {LDS_ONES + 128}, v{T}
    v_cndmask_b32 v{VVA}, v{T}, v{T+1}, vcc
    v_mov_b32 v{T+1}, 8192
    v_cndmask_b32 v{VINC}, v{T+1}, 0, vcc
    """)
    for r in list(range(O, O + 16)) + list(range(P, P + 8)) + list(range(VF + 8, VF + 16)):
        a(f"v_mov_b32 v{r}, 0")
    a("s_waitcnt vmcnt(4)")
    a("s_barrier")
    stamp(a, 5)
    def kread(p, kt):
        return f"ds_read_b128 v[{KF+4*p}:{KF+4*p+3}], v{VKA} offset:{LDS_K+1024*kt}"
    def vreads(p, kt):
        return [f"ds_read_b64_tr_b16 v[{VF+8*p+4*u+2*t}:{VF+8*p+4*u+2*t+1}], v{VVA} offset:{1024*kt+512*u+128*t}" for u in range(2) for t in range(2)]
    def qk(sp, p, useC=True):
        c = f"v[{C}:{C+15}]" if useC else "0"
        S = S_ + 16 * sp
        return f"v_mfma_f32_32x32x16_bf16 v[{S}:{S+15}], v[{KF+4*p}:{KF+4*p+3}], v[{Q}:{Q+3}], {c}"
    def pv(p, u):
        return f"v_mfma_f32_32x32x16_bf16 v[{O}:{O+15}], v[{VF+8*p+4*u}:{VF+8*p+4*u+3}], v[{P+4*u}:{P+4*u+3}], v[{O}:{O+15}]"
    a(kread(0, 0))
    a(kread(1, 1))
    a(f"s_cmp_eq_u32 s{S_MODE}, 1")
    a("s_waitcnt lgkmcnt(0)")
    a("s_cbranch_scc1 AT_HAVE_M")
    a(qk(0, 0, False))
    a(qk(1, 1, False))
    a(f"v_max3_f32 v{T}, v{S_}, v{S_+1}, v{S_+2}")
    for i in range(3, 31, 2):
        a(f"v_max3_f32 v{T}, v{T}, v{S_+i}, v{S_+i+1}")
    a(f"v_max_f32 v{T}, v{T}, v{S_+31}")
    a(f"s_mov_b32 s{S_T}, {f32(-TOFF)}")
    a("AT_FINM:")
    a(f"v_mov_b32 v{T+2}, v{T}")
    a(f"v_permlane32_swap_b32 v{T}, v{T+2}")
    a(f"v_max_f32 v{T}, v{T}, v{T+2}")
    a(f"v_sub_f32 v{C}, s{S_T}, v{T}")
    for i in range(1, 16):
        a(f"v_mov_b32 v{C+i}, v{C}")
    a(f"""
    s_cmp_eq_u32 s{S_MODE}, 0
    s_cbranch_scc1 AT_HAVE_M
    s_barrier
    s_branch AT_RESTART
    AT_HAVE_M:
    """)
    a(qk(0, 0))
    a(f"s_mov_b32 s{S_C}, 0")
    if "AT" in os.environ.get("PROF", ""):
        a("s_memtime s[0:1]\ns_waitcnt lgkmcnt(0)\ns_mov_b32 s11, s0")
    a("AT_LOOP:")
    for kt in range(8):
        p = kt & 1
        S = S_ + 16 * p
        extra = []
        if kt == 0:
            a("s_waitcnt vmcnt(2) lgkmcnt(0)")
            a("s_barrier")
        else:
            a("s_waitcnt lgkmcnt(0)")
        a(qk(1 - p, 1 - p))
        extra += vreads(p, kt)
        if kt == 6:
            extra += [f"v_add_u32 v{VKA}, 8192, v{VKA}", f"v_and_b32 v{VKA}, 0x7fff, v{VKA}"]
        extra += [kread(p, (kt + 2) % 8)]
        if kt == 7:
            extra += [f"v_add_u32 v{VVA}, v{VINC}, v{VVA}", f"v_and_b32 v{VVA}, 0x17fff, v{VVA}",
                      f"s_add_u32 s{S_C}, s{S_C}, 1", f"s_cmp_lt_u32 s{S_C}, 8"]
        if kt == 0:
            extra += [f"s_cmp_lt_u32 s{S_C}, 5", f"s_cselect_b32 s{R_A+2}, {WS_END}, 0"] + dma_chunk()
        ex = [f"v_exp_f32 v{S+i}, v{S+i}" for i in range(16)]
        cv = [f"v_cvt_pk_bf16_f32 v{P+i}, v{S+2*i}, v{S+2*i+1}" for i in range(8)]
        seq = ex[:4] + [pv(1 - p, 0)] + ex[4:8] + [pv(1 - p, 1)] + ex[8:] + cv
        for ins in seq:
            a(ins)
            if extra and ins.startswith("v_exp"):
                a(extra.pop(0))
        for e in extra:
            a(e)
    a("s_cbranch_scc1 AT_LOOP")
    a("s_waitcnt lgkmcnt(0)")
    a(pv(1, 0))
    a(pv(1, 1))
    if "AT" in os.environ.get("PROF", ""):
        a("s_memtime s[0:1]\ns_waitcnt lgkmcnt(0)\ns_sub_u32 s64, s0, s11")
    stamp(a, 6)
    a(f"""
    s_cmp_eq_u32 s{S_MODE}, 1
    s_cbranch_scc1 AT_FIN
    s_mov_b32 s{S_T+6}, {f32(LLIM)}
    v_cmp_nlt_f32 vcc, v{O+8}, s{S_T+6}
    v_add_f32 v{T+2}, abs(v{O}), abs(v{O+1})
    """)
    for i in range(2, 8):
        a(f"v_add_f32 v{T+2}, v{T+2}, abs(v{O+i})")
    a(f"""
    s_mov_b32 s{S_T+6}, 0x203
    v_cmp_class_f32 s[{S_T+4}:{S_T+5}], v{T+2}, s{S_T+6}
    s_or_b64 vcc, vcc, s[{S_T+4}:{S_T+5}]
    s_cmp_lg_u64 vcc, 0
    s_cselect_b32 s{S_T}, 1, 0
    v_mov_b32 v{T}, s{S_T}
    s_lshl_b32 s{S_T+1}, s{S_WAVE}, 2
    s_add_u32 s{S_T+1}, s{S_T+1}, {LDS_VOTE}
    v_mov_b32 v{T+1}, s{S_T+1}
    ds_write_b32 v{T+1}, v{T}
    s_waitcnt vmcnt(0) lgkmcnt(0)
    s_barrier
    v_and_b32 v{T+1}, 7, v{L}
    v_lshlrev_b32 v{T+1}, 2, v{T+1}
    v_add_u32 v{T+1}, {LDS_VOTE}, v{T+1}
    ds_read_b32 v{T}, v{T+1}
    s_waitcnt lgkmcnt(0)
    v_cmp_ne_u32 vcc, 0, v{T}
    s_nop 4
    s_cbranch_vccz AT_FIN
    s_mov_b32 s{S_MODE}, 1
    v_and_b32 v{T+4}, 31, v{L}
    v_lshlrev_b32 v{T+4}, 5, v{T+4}
    v_lshrrev_b32 v{T+5}, 5, v{L}
    v_lshl_add_u32 v{T+4}, v{T+5}, 4, v{T+4}
    s_add_u32 s{S_T}, s{S_T+2}, {WS_K}
    s_mov_b32 s{S_T+1}, 0
    v_mov_b32 v{T}, 0xff800000
    AT_MAXLOOP:
    buffer_load_dwordx4 v[{KF}:{KF+3}], v{T+4}, s[{R_WS}:{R_WS+3}], s{S_T} offen
    s_waitcnt vmcnt(0)
    """)
    a(qk(0, 0, False))
    for i in range(0, 16, 2):
        a(f"v_max3_f32 v{T}, v{T}, v{S_+i}, v{S_+i+1}")
    a(f"""
    s_add_u32 s{S_T}, s{S_T}, 1024
    s_add_u32 s{S_T+1}, s{S_T+1}, 1
    s_cmp_lt_u32 s{S_T+1}, 64
    s_cbranch_scc1 AT_MAXLOOP
    s_mov_b32 s{S_T}, 0
    s_branch AT_FINM
    AT_FIN:
    v_rcp_f32 v{T}, v{O+8}
    s_add_u32 s{S_T}, s{S_T+3}, {WS_O}
    v_mov_b32 v{T+1}, v{T}
    """)
    for i in range(4):
        a(f"v_mul_f32 v{O+2*i}, v{O+2*i}, v{T}")
        a(f"v_mul_f32 v{O+2*i+1}, v{O+2*i+1}, v{T}")
        a(f"v_cvt_pk_bf16_f32 v{P+i}, v{O+2*i}, v{O+2*i+1}")
    a(f"""
    buffer_store_dwordx4 v[{P}:{P+3}], v{VROW}, s[{R_WS}:{R_WS+3}], s{S_T} offen sc1
    s_lshl_b32 s{S_T}, s{S_P3}, 1
    s_lshr_b32 s{S_T+1}, s{S_P2}, 4
    s_add_u32 s{S_T}, s{S_T}, s{S_T+1}
    s_add_u32 s{S_T}, s{S_T}, {C_S5}
    s_waitcnt vmcnt(0)
    s_barrier
    s_cmp_eq_u32 s{S_WAVE}, 0
    s_cbranch_scc0 AT_END
    """)
    signal(a, S_T, T)
    a("AT_END:")
    if STAMP:
        a(f"s_mov_b32 s{70+2*12}, s{S_MODE}")
    stamp_flush(a, R_WS, S_WAVE, vbase=16)
    a("s_endpgm")
```

```python
from mega import *

SSM = os.environ.get('SS', '1') == '1'
WIN = int(os.environ.get('WIN', '8'))
PF2 = int(os.environ.get('PF2', '1'))
HPB = int(os.environ.get('HPB', '3'))
NAZ = int(os.environ.get('NAZ', '2'))
def gZ(a):
    return G2(a, "B1", BM=128, NT=4, mt=2, nt=2, NA=NAZ, NBB=4, ND=16, lds_a=0, lds_b=NAZ*16384, acc=16, fr=80, va=4, vb=8, G=1,
              st=dict(vb1=10, rows=[124, 126], cols=112, sel=120, tmp=(0, 15)), jmaj=True, **GK)
def gS(a):
    return G2(a, "B2", BM=64, NT=4, mt=1, nt=2, NA=3, NBB=6, ND=64, lds_a=0, lds_b=24576, acc=16, fr=48, va=4, vb=8, bblk=True, SS=SSM, **GK)
def gH(a):
    return G2(a, "B3", BM=64, NT=2, mt=1, nt=1, NA=4, NBB=8, ND=28, lds_a=0, lds_b=32768, acc=16, fr=48, va=4, vb=8, ablk=True, SS=SSM, **GK)
def gF(a):
    return G2(a, "B4", BM=64, NT=2, mt=1, nt=1, NA=6, NBB=8, ND=16, lds_a=0, lds_b=49152, acc=16, fr=48, va=4, vb=8, ablk=True, SS=SSM, **GK)

def b_params(a):
    a(f"""
    s_bfe_u32 s{S_P0}, s{S_IDX}, 0x20001
    s_lshl_b32 s{S_P0}, s{S_P0}, 2
    s_bfe_u32 s{S_T}, s{S_IDX}, 0x20003
    s_add_u32 s{S_P0}, s{S_P0}, s{S_T}
    s_and_b32 s{S_P1}, s{S_IDX}, 1
    s_mul_i32 s{S_P1}, s{S_P1}, 7
    s_lshr_b32 s{S_P3}, s{S_IDX}, 5
    s_add_u32 s{S_P1}, s{S_P1}, s{S_P3}
    s_and_b32 s{S_P2}, s{S_IDX}, 7
    s_lshl_b32 s{S_P2}, s{S_P2}, 2
    s_add_u32 s{S_P2}, s{S_P2}, s{S_T}
    """)

def b_loader(a):
    g, gs, gh, gf = gZ(a), gS(a), gH(a), gF(a)
    VP16, VL16 = 5, 16
    a("s_setprio 3")
    loader_lane_setup(a, 60)
    a(f"""
    v_and_b32 v{VP16}, 1, v{L}
    v_lshlrev_b32 v{VP16}, 8, v{VP16}
    v_lshlrev_b32 v{VL16}, 4, v{L}
    v_mov_b32 v{VZ0}, 0
    v_mov_b32 v{VZF}, 0
    s_cmp_lt_u32 s{S_IDX}, 224
    s_cbranch_scc1 BL_Z
    s_waitcnt lgkmcnt(0)
    """)
    srd(a, R_WS, S_WS, S_WS + 1, WS_END)
    srd(a, R_M, S_DBG, S_DBG + 1, 256)
    a("s_branch BL_H")
    a("BL_Z:")
    g.l_setup_a(8, 1024, 60)
    g.l_setup_b(12, 3584, 60, pstride=1792)
    g.l_bind(R_A, R_B, S_KA, S_KB)
    a(f"""
    s_lshl_b32 s{S_KA}, s{S_P0}, 17
    s_lshl_b32 s{S_KB}, s{S_P1}, 7
    s_lshl1_add_u32 s{S_T}, s{S_P0}, s{S_P3}
    s_and_b32 s{S_T}, s{S_T}, {7*ROT}
    """)
    g.l_rot(S_T)
    a("s_waitcnt lgkmcnt(0)")
    srd(a, R_A, S_X, S_X + 1, 2048 * 1024)
    srd(a, R_B, S_WIN, S_WIN + 1, 512 * 3584)
    order = g.pro_order()
    g.l_issue(order[:HPB])
    srd(a, R_WS, S_WS, S_WS + 1, WS_END)
    stamp(a, 1)
    g.l_run(order[:HPB], late=order[HPB:])
    z0_issue(a)
    gs.l_setup_a(8, 4096, 60)
    gs.l_setup_b(12, None, 60)
    gs.l_bind(R_A, R_WS, S_KA, S_KB)
    srd(a, R_A, S_WSP, S_WSP + 1, 2048 * 4096)
    a(f"""
    s_lshl_b32 s{S_KA}, s{S_P2}, 18
    s_lshl_b32 s{S_KB}, s{S_P3}, 19
    s_add_u32 s{S_KB}, s{S_KB}, {WS_Z2N}
    s_mul_i32 s{S_T}, s{S_P3}, {max(1, WIN//8) if WIN else 5}
    s_mul_i32 s{S_T+1}, s{S_P2}, {WIN//4 if WIN else 8}
    s_add_u32 s{S_T}, s{S_T}, s{S_T+1}
    s_and_b32 s{S_T}, s{S_T}, {((WIN-1) if WIN else 31)*ROT}
    """)
    gs.l_rot(S_T, WIN)
    a(f"""
    s_cmp_eq_u32 s{S_LW}, 0
    s_cbranch_scc1 BL_MLN
    """)
    oa, ob = gs.pro_order("a"), gs.pro_order("b")
    gs.l_issue(oa)
    if PF2:
        a(f"""
        v_lshlrev_b32 v60, 12, v{L}
        s_mul_i32 s{S_T}, s{S_P3}, 5
        s_lshl_b32 s{S_T+1}, s{S_LW}, 1
        s_add_u32 s{S_T}, s{S_T}, s{S_T+1}
        s_add_u32 s{S_T}, s{S_T}, 30
        s_and_b32 s{S_T+1}, s{S_T}, 31
        s_lshl_b32 s{S_T+1}, s{S_T+1}, 7
        s_add_u32 s{S_T+1}, s{S_T+1}, s{S_KA0}
        s_add_u32 s{S_T}, s{S_T}, 1
        s_and_b32 s{S_T}, s{S_T}, 31
        s_lshl_b32 s{S_T}, s{S_T}, 7
        s_add_u32 s{S_T}, s{S_T}, s{S_KA0}
        buffer_load_dword v61, v60, s[{R_A}:{R_A+3}], s{S_T+1} offen
        buffer_load_dword v61, v60, s[{R_A}:{R_A+3}], s{S_T} offen
        """)
        if PF2 == 2:
            a(f"""
            buffer_load_dword v61, v60, s[{R_A}:{R_A+3}], s{S_T+1} offen offset:64
            buffer_load_dword v61, v60, s[{R_A}:{R_A+3}], s{S_T} offen offset:64
            """)
    a(f"""
    s_barrier
    s_barrier
    s_barrier
    s_barrier
    s_branch BL_G3
    BL_MLN:
    s_barrier
    v_add_u32 v60, {LDS_LNS}, v{VL16}
    s_mul_i32 s{S_T}, s{S_P0}, 14336
    s_add_u32 s{S_T}, s{S_T}, {WS_LNP}
    s_lshl_b32 s{S_T+1}, s{S_P1}, 10
    s_add_u32 s{S_T+1}, s{S_T+1}, s{S_T}
    s_add_u32 s{S_T+2}, s{S_P0}, {C_S2}
    s_lshl_b32 s{S_T+3}, s{S_T+2}, 8
    s_add_u32 s{S_T+3}, s{S_T+3}, {WS_CNT}
    s_add_u32 s{S_T+4}, s{S_T}, 4096
    s_add_u32 s{S_T+5}, s{S_T}, 8192
    s_add_u32 s{S_T+6}, s{S_T}, 12288
    v_mov_b32 v62, 1
    s_waitcnt vmcnt(0)
    """)
    stamp(a, 2)
    z0_check(a, "BLA")
    a(f"""
    s_mov_b64 exec, 1
    buffer_atomic_add v62, v{VZ0}, s[{R_WS}:{R_WS+3}], s{S_T+3} offen sc0 sc1
    s_mov_b64 exec, -1
    s_barrier
    ds_read_b128 v[64:67], v60
    ds_read_b128 v[68:71], v60 offset:1024
    ds_read_b128 v[72:75], v60 offset:2048
    ds_read_b128 v[76:79], v60 offset:3072
    s_waitcnt vmcnt(0) lgkmcnt(0)
    v_pk_add_f32 v[64:65], v[64:65], v[68:69]
    v_pk_add_f32 v[66:67], v[66:67], v[70:71]
    v_pk_add_f32 v[72:73], v[72:73], v[76:77]
    v_pk_add_f32 v[74:75], v[74:75], v[78:79]
    v_pk_add_f32 v[64:65], v[64:65], v[72:73]
    v_pk_add_f32 v[66:67], v[66:67], v[74:75]
    v_or_b32 v64, 1, v64
    v_or_b32 v65, 1, v65
    v_or_b32 v66, 1, v66
    v_or_b32 v67, 1, v67
    buffer_store_dwordx4 v[64:67], v{VL16}, s[{R_WS}:{R_WS+3}], s{S_T+1} offen sc1
    v_readfirstlane_b32 s{S_T+7}, v62
    s_cmp_eq_u32 s{S_T+7}, 13
    s_cbranch_scc1 BL_S2_X
    """)
    poll(a, "BL_S2", R_WS, VZ0, f"s{S_T+3}", 14, 61, inv=False)
    stamp(a, 3)
    D = 64
    a(f"s_mov_b32 s{S_T+8}, 0")
    a("BL_LNP:")
    for e in range(14):
        a(f"buffer_load_dwordx4 v[{D+4*e}:{D+4*e+3}], v{VL16}, s[{R_WS}:{R_WS+3}], s{[S_T, S_T+4, S_T+5, S_T+6][e >> 2]} offen offset:{(e & 3)*1024} sc1")
    a("s_waitcnt vmcnt(0)")
    for c in range(2):
        regs = list(range(D + 28 * c, D + 28 * c + 28))
        a(f"v_min_u32 v{61+c}, v{regs[0]}, v{regs[1]}")
    for k in range(2, 28, 2):
        for c in range(2):
            a(f"v_min3_u32 v{61+c}, v{61+c}, v{D+28*c+k}, v{D+28*c+k+1}")
    a(f"""
    v_min_u32 v61, v61, v62
    v_cmp_eq_u32 vcc, 0, v61
    s_add_u32 s{S_T+8}, s{S_T+8}, 1
    s_cmp_gt_u32 s{S_T+8}, {POLL_MAX}
    s_cbranch_scc1 BL_LNX
    s_cbranch_vccz BL_LNX
    s_sleep 2
    s_branch BL_LNP
    BL_LNX:
    """)
    n = 14
    idx = list(range(14))
    while len(idx) > 1:
        nxt = []
        for k in range(0, len(idx) - 1, 2):
            for q in range(4):
                a(f"v_add_f32 v{D+4*idx[k]+q}, v{D+4*idx[k]+q}, v{D+4*idx[k+1]+q}")
            nxt.append(idx[k])
        if len(idx) & 1:
            nxt.append(idx[-1])
        idx = nxt
    ls = []
    for i in range(2):
        M, R = D + 2 * i, D + 2 * i + 1
        ls.append([f"v_mul_f32 v{M}, {f32(1.0/896)}, v{M}",
                   f"v_mul_f32 v{R}, {f32(1.0/896)}, v{R}",
                   f"v_fma_f32 v{R}, -v{M}, v{M}, v{R}",
                   f"v_max_f32 v{R}, 0, v{R}"] + bf16r_l(R, R) + [f"v_add_f32 v{R}, {f32(1e-5)}, v{R}"] + bf16r_l(R, R) +
                  [f"v_sqrt_f32 v{R}, v{R}"] + bf16r_l(R, R) + [f"v_rcp_f32 v{R}, v{R}"] + bf16r_l(M, M))
    interleave(a, ls)
    a(f"""
    ds_write_b128 v60, v[{D}:{D+3}] offset:{LDS_LNQ - LDS_LNS}
    s_waitcnt lgkmcnt(0)
    s_barrier
    """)
    stamp(a, 4)
    gs.l_issue(oa)
    a(f"""
    s_add_u32 s{S_T}, s{S_P1}, {C_S3}
    s_lshl_b32 s{S_T+1}, s{S_P3}, 9
    s_add_u32 s{S_T+1}, s{S_T+1}, {WS_CNT + C_S3*256}
    s_barrier
    """)
    stamp(a, 5)
    signal(a, S_T, 60)
    poll(a, "BL_S3", R_WS, VP16, f"s{S_T+1}", 16, 60)
    a("BL_G3:")
    a("s_barrier")
    stamp(a, 6)
    gs.l_issue(ob)
    gs.l_run(oa + ob)
    stamp(a, 7)
    a("BL_H:")
    gh.l_setup_a(8, None, 60)
    gh.l_setup_b(12, 1024, 60)
    gh.l_bind(R_WS, R_B, S_KA, S_KB)
    srd(a, R_B, S_WOUT, S_WOUT + 1, 896 * 1024)
    a(f"""
    s_lshl_b32 s{S_KA}, s{S_P2}, 11
    s_add_u32 s{S_KA}, s{S_KA}, {WS_H}
    s_lshl_b32 s{S_KB}, s{S_P3}, 7
    s_and_b32 s{S_T}, s{S_P2}, 3
    s_lshl_b32 s{S_T}, s{S_T}, 1
    s_add_u32 s{S_T}, s{S_T}, s{S_P3}
    s_lshl_b32 s{S_T}, s{S_T}, 1
    s_sub_u32 s{S_T+1}, s{S_T}, 14
    s_cmp_ge_u32 s{S_T}, 14
    s_cselect_b32 s{S_T}, s{S_T+1}, s{S_T}
    s_mul_i32 s{S_T}, s{S_T}, {ROT}
    """)
    gh.l_rot(S_T)
    oa, ob = gh.pro_order("a"), gh.pro_order("b")
    gh.l_issue(ob)
    a(f"""
    s_add_u32 s{S_T}, s{S_P2}, {C_S4}
    s_lshl_b32 s{S_T+1}, s{S_T}, 8
    s_add_u32 s{S_T+1}, s{S_T+1}, {WS_CNT}
    s_cmp_lt_u32 s{S_IDX}, 224
    s_cbranch_scc0 BL_NS4
    s_barrier
    s_cmp_eq_u32 s{S_LW}, 0
    s_cbranch_scc0 BL_G4
    """)
    signal(a, S_T, 60)
    a(f"""
    BL_NS4:
    s_cmp_eq_u32 s{S_LW}, 0
    s_cbranch_scc0 BL_G4
    """)
    stamp(a, 8)
    z0_check(a, "BLC")
    poll(a, "BL_S4", R_WS, VZ0, f"s{S_T+1}", 7, 60)
    a("BL_G4:")
    a("s_barrier")
    stamp(a, 9)
    gh.l_issue(oa)
    gh.l_run(ob + oa)
    for k in ("vda", "vdb", "ka_step", "kb_step", "b_imm"):
        setattr(gf, k, getattr(gh, k))
    gf.l_bind(R_WS, R_B, S_KA, S_KB)
    srd(a, R_B, S_WO, S_WO + 1, 512 * 1024)
    a(f"""
    s_lshl_b32 s{S_KA}, s{S_P2}, 11
    s_add_u32 s{S_KA}, s{S_KA}, {WS_O}
    s_lshl_b32 s{S_KB}, s{S_P3}, 7
    s_lshl_b32 s{S_T}, s{S_P2}, 1
    s_add_u32 s{S_T}, s{S_T}, s{S_P3}
    s_and_b32 s{S_T}, s{S_T}, {7*ROT}
    """)
    gf.l_rot(S_T)
    a(f"""
    v_and_b32 v61, 1, v{L}
    v_lshlrev_b32 v61, 8, v61
    s_and_b32 s{S_T+1}, s{S_IDX}, 7
    s_lshl_b32 s{S_T+1}, s{S_T+1}, 9
    s_add_u32 s{S_T+1}, s{S_T+1}, {WS_CNT + C_S5*256}
    """)
    oa, ob = gf.pro_order("a"), gf.pro_order("b")
    gf.l_issue(ob)
    stamp(a, 10)
    a(f"""
    s_cmp_eq_u32 s{S_LW}, 0
    s_cbranch_scc0 BL_G5
    """)
    poll(a, "BL_S5", R_WS, 61, f"s{S_T+1}", 16, 60)
    a("BL_G5:")
    a("s_barrier")
    stamp(a, 11)
    gf.l_issue(oa)
    gf.l_run(ob + oa)
    stamp_flush(a, R_WS, S_WAVE)
    a("s_endpgm")


VD = 15
OFS = [0, 64] if (PF == 2 or PF2 == 2) else [0]

def pf_wout(a, T):
    a(f"""
    s_bfe_u32 s{S_T}, s{S_IDX}, 0x20003
    s_lshl_b32 s{S_T}, s{S_T}, 2
    s_add_u32 s{S_T}, s{S_T}, s{S_WAVE}
    s_mul_i32 s{S_T+1}, s{S_T}, {56*1024}
    s_lshl_b32 s{S_T}, s{S_T}, 15
    s_lshl_b32 s{S_T+2}, s{S_P3}, 7
    s_add_u32 s{S_T}, s{S_T}, s{S_T+2}
    s_add_u32 s{S_T+1}, s{S_T+1}, s{S_T+2}
    v_min_u32 v{T}, 55, v{L}
    v_lshlrev_b32 v{T}, 10, v{T}
    v_and_b32 v{T+1}, 31, v{L}
    v_lshlrev_b32 v{T+1}, 10, v{T+1}
    v_lshrrev_b32 v{T+2}, 5, v{L}
    v_lshl_add_u32 v{T+1}, v{T+2}, 6, v{T+1}
    """)
    srd(a, R_A, S_WOUT, S_WOUT + 1, 896 * 1024)
    srd(a, R_B, S_WO, S_WO + 1, 512 * 1024)
    for o in OFS:
        a(f"buffer_load_dword v{VD}, v{T}, s[{R_A}:{R_A+3}], s{S_T+1} offen offset:{o}")
    a(f"buffer_load_dword v{VD}, v{T+1}, s[{R_B}:{R_B+3}], s{S_T} offen")

def b_compute(a):
    g, gs, gh, gf = gZ(a), gS(a), gH(a), gF(a)
    T = 112
    a(f"s_setprio {os.environ.get('PB1', '1')}")
    compute_lane_setup(a, T)
    VR = 12
    a(f"""
    s_lshr_b32 s{S_T}, s{S_WAVE}, 1
    s_lshl_b32 s{S_T}, s{S_T}, 5
    s_lshl_b32 s{S_T+1}, s{S_P2}, 6
    s_add_u32 s{S_T}, s{S_T}, s{S_T+1}
    v_and_b32 v{T}, 31, v{L}
    v_add_u32 v{VR+1}, s{S_T}, v{T}
    v_lshrrev_b32 v{T+1}, 5, v{L}
    v_lshlrev_b32 v{T+1}, 4, v{T+1}
    v_lshl_add_u32 v{VR}, v{VR+1}, 5, v{T+1}
    v_lshl_add_u32 v{VR+2}, v{VR+1}, 10, v{T+1}
    s_waitcnt lgkmcnt(0)
    """)
    srd(a, R_WS, S_WS, S_WS + 1, WS_END)
    a(f"""
    s_cmp_lt_u32 s{S_IDX}, 224
    s_cbranch_scc1 BC_Z
    """)
    if PF:
        srd(a, R_A, S_WSP, S_WSP + 1, 2048 * 4096)
        a(f"""
        v_lshlrev_b32 v{T}, 12, v{L}
        s_lshl_b32 s{S_T}, s{S_P2}, 18
        s_lshl_b32 s{S_T+1}, s{S_WAVE}, 7
        s_add_u32 s{S_T}, s{S_T}, s{S_T+1}
        buffer_load_dword v{VD}, v{T}, s[{R_A}:{R_A+3}], s{S_T} offen
        s_waitcnt vmcnt(0)
        """)
        for i in range(8):
            for o in OFS:
                if i or o:
                    a(f"buffer_load_dword v{VD}, v{T}, s[{R_A}:{R_A+3}], s{S_T} offen offset:{i*512+o}")
        a("s_waitcnt vmcnt(0)")
    a("s_branch BC_H")
    a("BC_Z:")
    if PF:
        srd(a, R_A, S_WIN, S_WIN + 1, 512 * 3584)
        a(f"""
        v_lshrrev_b32 v{T}, 1, v{L}
        v_mul_u32_u24 v{T}, 3584, v{T}
        v_and_b32 v{T+1}, 1, v{L}
        v_lshl_add_u32 v{T}, v{T+1}, 7, v{T}
        s_bfe_u32 s{S_T}, s{S_IDX}, 0x20003
        s_lshl_b32 s{S_T}, s{S_T}, 2
        s_add_u32 s{S_T}, s{S_T}, s{S_WAVE}
        s_mul_i32 s{S_T}, s{S_T}, {32*3584}
        s_lshl_b32 s{S_T+1}, s{S_P1}, 8
        s_add_u32 s{S_T}, s{S_T}, s{S_T+1}
        """)
        for o in OFS:
            a(f"buffer_load_dword v{VD}, v{T}, s[{R_A}:{R_A+3}], s{S_T} offen offset:{o}")
    g.zero_acc()
    a(f"""
    s_mul_i32 s{S_T}, s{S_P0}, 14336
    s_lshl_b32 s{S_T+1}, s{S_P1}, 10
    s_add_u32 s{S_T}, s{S_T}, s{S_T+1}
    s_add_u32 s{S_T}, s{S_T}, {WS_LNP}
    v_lshlrev_b32 v{T}, 2, v0
    buffer_store_dword v16, v{T}, s[{R_WS}:{R_WS+3}], s{S_T} offen sc1
    """)
    g.c_setup()
    stamp(a, 1)
    g.c_run(per=7)
    stamp(a, 2)
    a("s_waitcnt vmcnt(0)")
    RD = 4
    rank1(a, g, LDS_STB, RD, 120, 96, 112, 114)
    stamp(a, 3)
    K0 = -2.0 * 0.7978845608028654 * 1.4426950408889634
    K1c = K0 * 0.044715
    PK, t = 80, 112
    U = 116
    a(f"""
    s_mov_b32 s{S_T+2}, {f32(K1c)}
    s_mov_b32 s{S_T+3}, {f32(K1c)}
    v_mov_b32 v{U+4}, {f32(K0)}
    v_mov_b32 v{U+5}, {f32(K0)}
    s_lshr_b32 s{S_T}, s{S_WAVE}, 1
    s_lshl_b32 s{S_T}, s{S_T}, 6
    v_and_b32 v{U+6}, 31, v{L}
    v_add_u32 v{U+6}, s{S_T}, v{U+6}
    s_lshl_b32 s{S_T+1}, s{S_P0}, 7
    v_add_u32 v{U+7}, s{S_T+1}, v{U+6}
    v_lshrrev_b32 v{U+8}, 5, v{L}
    v_lshlrev_b32 v{U+7}, 5, v{U+7}
    v_lshl_add_u32 v{U+7}, v{U+8}, 4, v{U+7}
    """)
    def gelu(j):
        for i in range(2):
            d = g.acc + (j * 2 + i) * 16
            for hf in range(2):
                o = PK + (j * 2 + i) * 8 + hf * 4
                rs = [d + hf * 8 + 2 * p for p in range(4)]
                for p, r in enumerate(rs):
                    a(f"v_mul_f32 v{r}, v{r}, v{RD+i}")
                    a(f"v_mul_f32 v{r+1}, v{r+1}, v{RD+i}")
                for p, r in enumerate(rs):
                    a(f"v_cvt_pk_bf16_f32 v{o+p}, v{r}, v{r+1}")
                for p, r in enumerate(rs):
                    a(f"v_lshlrev_b32 v{r}, 16, v{o+p}")
                    a(f"v_and_b32 v{r+1}, 0xffff0000, v{o+p}")
                for p, r in enumerate(rs):
                    a(f"v_pk_mul_f32 v[{t+2*p}:{t+2*p+1}], v[{r}:{r+1}], v[{r}:{r+1}]")
                for p, r in enumerate(rs):
                    a(f"v_pk_fma_f32 v[{t+2*p}:{t+2*p+1}], v[{t+2*p}:{t+2*p+1}], s[{S_T+2}:{S_T+3}], v[{U+4}:{U+5}]")
                for p, r in enumerate(rs):
                    a(f"v_pk_mul_f32 v[{t+2*p}:{t+2*p+1}], v[{t+2*p}:{t+2*p+1}], v[{r}:{r+1}]")
                for q in range(8):
                    a(f"v_exp_f32 v{t+q}, v{t+q}")
                for p, r in enumerate(rs):
                    a(f"v_pk_add_f32 v[{t+2*p}:{t+2*p+1}], v[{t+2*p}:{t+2*p+1}], 1.0 op_sel_hi:[1,0]")
                for q in range(8):
                    a(f"v_rcp_f32 v{t+q}, v{t+q}")
                for p, r in enumerate(rs):
                    a(f"v_pk_mul_f32 v[{t+2*p}:{t+2*p+1}], v[{t+2*p}:{t+2*p+1}], v[{r}:{r+1}]")
                for p, r in enumerate(rs):
                    a(f"v_cvt_pk_bf16_f32 v{o+p}, v{t+2*p}, v{t+2*p+1}")
    def zstore(j, sb):
        for hf in range(2):
            for i in range(2):
                o = PK + (j * 2 + i) * 8 + hf * 4
                a(f"buffer_store_dwordx4 v[{o}:{o+3}], v{U+7}, s[{R_WS}:{R_WS+3}], s{sb+hf} offen offset:{i*1024} sc1")
    gelu(1)
    a(f"""
    s_and_b32 s{S_T+1}, s{S_WAVE}, 1
    s_lshl_b32 s{S_T}, s{S_P1}, 18
    s_lshl_b32 s{S_T+4}, s{S_T+1}, 17
    s_add_u32 s{S_T}, s{S_T}, s{S_T+4}
    s_add_u32 s{S_T+4}, s{S_T}, {WS_Z1}
    s_add_u32 s{S_T+5}, s{S_T}, {WS_Z1 + PL}
    s_add_u32 s{S_T+6}, s{S_T}, {WS_Z2N}
    s_add_u32 s{S_T+7}, s{S_T}, {WS_Z2N + PL}
    """)
    for p in range(8):
        for i in range(2):
            o = PK + (2 + i) * 8 + p
            r = g.acc + (2 + i) * 16 + 2 * p
            S = t + 4 * i
            a(f"v_lshlrev_b32 v{r}, 16, v{o}")
            a(f"v_and_b32 v{r+1}, 0xffff0000, v{o}")
            if p == 0:
                a(f"v_mov_b32 v{S}, v{r}\nv_mul_f32 v{S+1}, v{r}, v{r}\nv_mov_b32 v{S+2}, v{r+1}\nv_mul_f32 v{S+3}, v{r+1}, v{r+1}")
            else:
                a(f"v_add_f32 v{S}, v{S}, v{r}\nv_fmac_f32 v{S+1}, v{r}, v{r}\nv_add_f32 v{S+2}, v{S+2}, v{r+1}\nv_fmac_f32 v{S+3}, v{r+1}, v{r+1}")
    a(f"""
    v_lshl_add_u32 v{U+8}, s{S_T+1}, 1, v{U+8}
    v_lshlrev_b32 v{U+8}, 10, v{U+8}
    v_lshl_add_u32 v{U+8}, v{U+6}, 3, v{U+8}
    v_add_u32 v{U+8}, {LDS_LNS}, v{U+8}
    v_pk_add_f32 v[{t}:{t+1}], v[{t}:{t+1}], v[{t+2}:{t+3}]
    v_pk_add_f32 v[{t+4}:{t+5}], v[{t+4}:{t+5}], v[{t+6}:{t+7}]
    ds_write_b64 v{U+8}, v[{t}:{t+1}]
    ds_write_b64 v{U+8}, v[{t+4}:{t+5}] offset:256
    v_lshlrev_b32 v{U+9}, 3, v{U+6}
    v_add_u32 v{U+9}, {LDS_LNQ}, v{U+9}
    s_waitcnt lgkmcnt(0)
    s_barrier
    """)
    stamp(a, 4)
    gelu(0)
    zstore(0, S_T + 4)
    a("s_barrier")
    stamp(a, 5)
    a(f"ds_read_b64 v[6:7], v{U+9}")
    a(f"ds_read_b64 v[8:9], v{U+9} offset:256")
    a("s_waitcnt lgkmcnt(0)")
    for hf in range(2):
        for i in range(2):
            M, R = 6 + 2 * i, 7 + 2 * i
            pr = [(g.acc + (2 + i) * 16 + 2 * p, PK + (2 + i) * 8 + p) for p in range(4 * hf, 4 * hf + 4)]
            interleave(a, [[f"v_sub_f32 v{r}, v{r}, v{M}",
                            f"v_sub_f32 v{r+1}, v{r+1}, v{M}",
                            f"v_cvt_pk_bf16_f32 v{o}, v{r}, v{r+1}",
                            f"v_lshlrev_b32 v{r}, 16, v{o}",
                            f"v_and_b32 v{r+1}, 0xffff0000, v{o}",
                            f"v_mul_f32 v{r}, v{r}, v{R}",
                            f"v_mul_f32 v{r+1}, v{r+1}, v{R}",
                            f"v_cvt_pk_bf16_f32 v{o}, v{r}, v{r+1}"] for r, o in pr])
            o = PK + (2 + i) * 8 + hf * 4
            a(f"buffer_store_dwordx4 v[{o}:{o+3}], v{U+7}, s[{R_WS}:{R_WS+3}], s{S_T+6+hf} offen offset:{i*1024} sc1")
    gs.c_setup()
    gs.zero_acc()
    srd(a, R_M, S_BSP, S_BSP + 1, 4096)
    Z1 = 96
    a(f"""
    v_lshlrev_b32 v{T}, 1, v{VR+1}
    buffer_load_ushort v{T+1}, v{T}, s[{R_M}:{R_M+3}], 0 offen
    s_and_b32 s{S_T+1}, s{S_WAVE}, 1
    s_lshl_b32 s{S_T+4}, s{S_P3}, 19
    s_lshl_b32 s{S_T+1}, s{S_T+1}, 18
    s_add_u32 s{S_T+4}, s{S_T+4}, s{S_T+1}
    s_add_u32 s{S_T+5}, s{S_T+4}, {WS_Z1}
    s_add_u32 s{S_T+4}, s{S_T+4}, {WS_H}
    v_lshrrev_b32 v{T+4}, 3, v{L}
    v_lshlrev_b32 v{T+4}, 16, v{T+4}
    v_and_b32 v{T+5}, 7, v{L}
    v_lshl_add_u32 v{T+4}, v{T+5}, 7, v{T+4}
    s_bfe_u32 s{S_T+6}, s{S_IDX}, 0x20003
    s_lshl_b32 s{S_T+7}, s{S_WAVE}, 2
    s_add_u32 s{S_T+6}, s{S_T+6}, s{S_T+7}
    s_lshl_b32 s{S_T+6}, s{S_T+6}, 10
    s_lshl_b32 s{S_T+7}, s{S_P3}, 19
    s_add_u32 s{S_T+6}, s{S_T+6}, s{S_T+7}
    s_add_u32 s{S_T+6}, s{S_T+6}, {WS_Z2N}
    s_waitcnt vmcnt(0)
    s_barrier
    """)
    stamp(a, 6)
    if PF2:
        pf_wout(a, T + 8)
    a("s_barrier")
    stamp(a, 7)
    if PF:
        for i in range(4):
            for o in OFS:
                a(f"buffer_load_dword v{VD}, v{T+4}, s[{R_WS}:{R_WS+3}], s{S_T+6} offen offset:{o}")
            a(f"s_add_u32 s{S_T+6}, s{S_T+6}, 16384")
    def z1load():
        for k in range(4):
            a(f"buffer_load_dwordx4 v[{Z1+4*k}:{Z1+4*k+3}], v{VR}, s[{R_WS}:{R_WS+3}], s{S_T+5} offen")
            a(f"s_add_u32 s{S_T+5}, s{S_T+5}, {PL}")
    a(f"s_setprio {os.environ.get('PSP', '0')}")
    gs.c_run(per=int(os.environ.get('PER2', '4')), after_first=z1load)
    a("s_setprio 2")
    stamp(a, 8)
    a("s_waitcnt vmcnt(0)")
    a(f"v_lshlrev_b32 v{T+2}, 16, v{T+1}")
    a(f"v_mov_b32 v{T+3}, v{T+2}")
    for k in range(4):
        ls = []
        for p in range(4):
            r = gs.acc + 8 * k + 2 * p
            z = Z1 + 4 * k + p
            F, G_ = T + 4 + p, T + 8 + 2 * p
            ls.append([f"v_cvt_pk_bf16_f32 v{F}, v{r}, v{r+1}",
                       f"v_lshlrev_b32 v{r}, 16, v{F}",
                       f"v_and_b32 v{r+1}, 0xffff0000, v{F}",
                       f"v_pk_add_f32 v[{r}:{r+1}], v[{r}:{r+1}], v[{T+2}:{T+3}]",
                       f"v_cvt_pk_bf16_f32 v{F}, v{r}, v{r+1}",
                       f"v_lshlrev_b32 v{r}, 16, v{F}",
                       f"v_and_b32 v{r+1}, 0xffff0000, v{F}",
                       f"v_lshlrev_b32 v{G_}, 16, v{z}",
                       f"v_and_b32 v{G_+1}, 0xffff0000, v{z}",
                       f"v_pk_mul_f32 v[{r}:{r+1}], v[{r}:{r+1}], v[{G_}:{G_+1}]",
                       f"v_cvt_pk_bf16_f32 v{z}, v{r}, v{r+1}"])
        interleave(a, ls)
        a(f"buffer_store_dwordx4 v[{Z1+4*k}:{Z1+4*k+3}], v{VR}, s[{R_WS}:{R_WS+3}], s{S_T+4} offen sc1")
        a(f"s_add_u32 s{S_T+4}, s{S_T+4}, {PL}")
    a("s_waitcnt vmcnt(0) lgkmcnt(0)")
    a("s_barrier")
    a("BC_H:")
    stamp(a, 9)
    gh.c_setup()
    gh.zero_acc()
    X, BR = 96, 104
    srd(a, R_M, S_X, S_X + 1, 2048 * 1024)
    a(f"""
    s_and_b32 s{S_T+1}, s{S_WAVE}, 1
    s_lshl_b32 s{S_T+1}, s{S_T+1}, 6
    s_lshl_b32 s{S_T+4}, s{S_P3}, 7
    s_add_u32 s{S_T+4}, s{S_T+4}, s{S_T+1}
    buffer_load_dwordx4 v[{X}:{X+3}], v{VR+2}, s[{R_M}:{R_M+3}], s{S_T+4} offen
    buffer_load_dwordx4 v[{X+4}:{X+7}], v{VR+2}, s[{R_M}:{R_M+3}], s{S_T+4} offen offset:32
    v_lshrrev_b32 v{T}, 4, v{L}
    v_lshlrev_b32 v{T}, 16, v{T}
    v_and_b32 v{T+1}, 15, v{L}
    v_lshl_add_u32 v{T}, v{T+1}, 7, v{T}
    s_lshl_b32 s{S_T}, s{S_P3}, 2
    s_add_u32 s{S_T}, s{S_T}, s{S_WAVE}
    s_mul_i32 s{S_T+1}, s{S_T}, 205
    s_lshr_b32 s{S_T+1}, s{S_T+1}, 11
    s_mul_i32 s{S_T+1}, s{S_T+1}, 10
    s_sub_u32 s{S_T}, s{S_T}, s{S_T+1}
    s_lshl_b32 s{S_T}, s{S_T}, 18
    s_lshl_b32 s{S_T+1}, s{S_P2}, 11
    s_add_u32 s{S_T}, s{S_T}, s{S_T+1}
    s_add_u32 s{S_T}, s{S_T}, {WS_H + 16*PL}
    s_barrier
    """)
    if PF:
        for o in OFS:
            a(f"buffer_load_dword v{VD}, v{T}, s[{R_WS}:{R_WS+3}], s{S_T} offen offset:{o}")
    gh.c_run(per=6)
    stamp(a, 10)
    for p in range(8):
        a(f"v_cvt_pk_bf16_f32 v{BR+p}, v{gh.acc+2*p}, v{gh.acc+2*p+1}")
    a("s_waitcnt lgkmcnt(0)")
    gf.c_setup()
    gf.zero_acc()
    srd(a, R_M, S_OUT, S_OUT + 1, 2048 * 1024)
    a("s_barrier")
    gf.c_run(per=6)
    stamp(a, 11)
    a("s_waitcnt vmcnt(0)")
    for hf in range(2):
        ls = []
        for p in range(4 * hf, 4 * hf + 4):
            r = gf.acc + 2 * p
            F, G_ = T + (p & 3), T + 4 + 2 * (p & 3)
            ls.append([f"v_cvt_pk_bf16_f32 v{F}, v{r}, v{r+1}",
                       f"v_lshlrev_b32 v{r}, 16, v{F}",
                       f"v_and_b32 v{r+1}, 0xffff0000, v{F}",
                       f"v_lshlrev_b32 v{G_}, 16, v{X+p}",
                       f"v_and_b32 v{G_+1}, 0xffff0000, v{X+p}",
                       f"v_pk_add_f32 v[{r}:{r+1}], v[{r}:{r+1}], v[{G_}:{G_+1}]",
                       f"v_cvt_pk_bf16_f32 v{F}, v{r}, v{r+1}",
                       f"v_lshlrev_b32 v{r}, 16, v{F}",
                       f"v_and_b32 v{r+1}, 0xffff0000, v{F}",
                       f"v_lshlrev_b32 v{G_}, 16, v{BR+p}",
                       f"v_and_b32 v{G_+1}, 0xffff0000, v{BR+p}",
                       f"v_pk_add_f32 v[{r}:{r+1}], v[{r}:{r+1}], v[{G_}:{G_+1}]",
                       f"v_cvt_pk_bf16_f32 v{X+p}, v{r}, v{r+1}"])
        interleave(a, ls)
        a(f"buffer_store_dwordx4 v[{X+4*hf}:{X+4*hf+3}], v{VR+2}, s[{R_M}:{R_M+3}], s{S_T+4} offen offset:{32*hf}")
    if STAMP:
        a("s_waitcnt lgkmcnt(0)")
    stamp_flush(a, R_WS, S_WAVE, vbase=32)
    a("s_endpgm")


LIST = STAMP or os.environ.get('LIST', '0') == '1'
def gen():
    a = Asm()
    name = "mega_kernel" if LIST else "parallel_sum__softmax_full_mha__mixer_gmlp__prompt_kernel"
    a(kernel_header(name))
    a(f"""
    s_cmp_ge_u32 s2, 512
    s_cbranch_scc1 M_END
    """)
    if os.environ.get("ONLY") == "A":
        a("s_cmp_ge_u32 s2, 256\ns_cbranch_scc1 M_END")
    if os.environ.get("ONLY") == "B":
        a("s_sub_u32 s3, s2, 1\ns_cmp_lt_u32 s3, 255\ns_cbranch_scc1 M_END")
    if os.environ.get("SWAP") == "1":
        a("s_xor_b32 s2, s2, 256")
    stamp_init(a)
    stamp(a, 0)
    a(f"""
    s_load_dwordx8 s[4:11], s[0:1], 0
    s_load_dwordx8 s[12:19], s[0:1], 32
    s_load_dwordx4 s[20:23], s[0:1], 64
    s_load_dwordx2 s[24:25], s[0:1], 80
    v_and_b32 v{L}, 63, v0
    v_lshrrev_b32 v2, 6, v0
    v_readfirstlane_b32 s{S_WAVE}, v2
    s_and_b32 s{S_IDX}, s2, 255
    s_sub_u32 s{S_LW}, s{S_WAVE}, 4
    s_cmp_ge_u32 s2, 256
    s_cbranch_scc1 M_B
    """)
    a_params(a)
    a(f"""
    s_cmp_ge_u32 s{S_WAVE}, 4
    s_cbranch_scc0 M_AC
    """)
    a_loader(a)
    a("M_AC:")
    a_compute(a)
    a("M_B:")
    b_params(a)
    a(f"""
    s_cmp_ge_u32 s{S_WAVE}, 4
    s_cbranch_scc0 M_BC
    """)
    b_loader(a)
    a("M_BC:")
    b_compute(a)
    a("M_END:")
    a("s_endpgm")
    return name, a.render(), kernel_desc(name, 128, 128)

HEAD = open("parallel_sum__softmax_full_mha__mixer_gmlp__prompt.s.ref").read().split("; Override launch")[0]
if __name__ == "__main__":
    n, t, d = gen()
    out = HEAD + f"; @launch {'kernel=' + n + ' ' if LIST else ''}grid=(512,1,1) block=(512,1,1) lds=81920\n"
    out += '.amdgcn_target "amdgcn-amd-amdhsa--gfx950"\n.text\n' + t + '.section .rodata,"a"\n.p2align 6\n' + d
    path = sys.argv[1] if len(sys.argv) > 1 else "parallel_sum__softmax_full_mha__mixer_gmlp__prompt.s"
    open(path, "w").write(out)
    print("wrote", path, len(out))
```

```python
from common import *

def lcm(x, y):
    return x * y // math.gcd(x, y)

V_LANE, V_AOFF, V_BOFF = 1, 2, 3
V_ROW, V_CHA, V_CHB = 2, 3, 4
LDS_MAX = 81920

def compute_lane_setup(a, t):
    L = V_LANE
    a(f"""
    v_and_b32 v{t}, 31, v{L}
    v_lshrrev_b32 v{t+1}, 5, v{L}
    v_bfe_u32 v{t+2}, v{t}, 1, 3
    v_xor_b32 v{t+2}, v{t+2}, v{t+1}
    v_lshlrev_b32 v{t+2}, 4, v{t+2}
    v_lshl_add_u32 v{V_AOFF}, v{t}, 7, v{t+2}
    v_bfe_u32 v{t+2}, v{L}, 2, 2
    v_lshl_add_u32 v{t+3}, v{t+1}, 3, v{t+2}
    v_lshlrev_b32 v{t+3}, 7, v{t+3}
    v_bfe_u32 v{t+4}, v{L}, 3, 1
    v_lshl_add_u32 v{t+3}, v{t+4}, 6, v{t+3}
    v_bfe_u32 v{t+4}, v{L}, 4, 1
    v_lshl_add_u32 v{t+3}, v{t+4}, 5, v{t+3}
    v_and_b32 v{t+4}, 1, v{L}
    v_lshl_add_u32 v{t+3}, v{t+4}, 4, v{t+3}
    v_bfe_u32 v{t+4}, v{L}, 1, 1
    v_lshl_add_u32 v{V_BOFF}, v{t+4}, 3, v{t+3}
    """)

def loader_lane_setup(a, t):
    L = V_LANE
    a(f"""
    v_lshrrev_b32 v{V_ROW}, 3, v{L}
    v_lshrrev_b32 v{t}, 4, v{L}
    v_and_b32 v{t+1}, 7, v{L}
    v_xor_b32 v{V_CHA}, v{t}, v{t+1}
    v_bfe_u32 v{t}, v{L}, 2, 1
    v_bfe_u32 v{t+1}, v{L}, 4, 1
    v_xor_b32 v{t}, v{t}, v{t+1}
    v_and_b32 v{t+1}, 3, v{L}
    v_lshl_add_u32 v{V_CHB}, v{t}, 2, v{t+1}
    """)

PLS = 1152
S_KA0, S_KA1, S_KB0, S_KB1, S_ROT, S_RT = 98, 99, 100, 101, 63, 53

class G2:
    def __init__(self, a, name, BM, NT, mt, nt, NA, NBB, ND, lds_a, lds_b, acc, fr, va, vb, s_wave, s_tmp, s_it, s_lw, s_ma, s_mb, G=2, st=None, s_one=None, ablk=False, bblk=False, SS=False, jmaj=False):
        self.__dict__.update(locals())
        self.AB = BM * 128
        self.BB = 2 * NT * PLS if bblk else (NT // 2) * 4096
        self.qa = BM // 32
        self.qb = NT // 2
        self.FS = 4 * G * (mt + nt)
        self.period = lcm(NA, NBB // 2) if SS else lcm(2 * NA, NBB)
        self.breg, self.vlds = {}, None
        assert lds_a + NA * self.AB <= LDS_MAX and lds_b + NBB * self.BB <= LDS_MAX

    def c_setup(self):
        a, st = self.a, self.s_tmp
        a(f"s_lshr_b32 s{st}, s{self.s_wave}, 1")
        if self.st:
            a(f"s_xor_b32 s{st+2}, s{st}, s{self.s_wave}")
            a(f"s_and_b32 s{st+2}, s{st+2}, 1")
            a(f"s_lshl_b32 s{st+3}, s{st+2}, 5")
            a(f"s_lshl_b32 s{st+2}, s{st+2}, 11")
        L = V_LANE
        a(f"s_mul_i32 s{st}, s{st}, {self.mt*(1024 if self.ablk else 4096)}")
        if self.lds_a:
            a(f"s_add_u32 s{st}, s{st}, {self.lds_a}")
        if self.ablk:
            va = self.va
            a(f"""
            v_lshrrev_b32 v{va+1}, 5, v{L}
            v_bfe_u32 v{va+2}, v{L}, 3, 1
            v_xor_b32 v{va+1}, v{va+1}, v{va+2}
            v_and_b32 v{va}, 31, v{L}
            v_lshlrev_b32 v{va}, 5, v{va}
            v_lshl_add_u32 v{va}, v{va+1}, 4, v{va}
            v_add_u32 v{va}, s{st}, v{va}
            """)
        else:
            a(f"v_add_u32 v{self.va}, s{st}, v{V_AOFF}")
            if self.st:
                a(f"v_xor_b32 v{self.va}, s{st+3}, v{self.va}")
            for ks in range(1, 4):
                a(f"v_xor_b32 v{self.va+ks}, {ks*32}, v{self.va}")
        if self.bblk:
            vb = self.vb
            a(f"""
            s_and_b32 s{st}, s{self.s_wave}, 1
            s_mul_i32 s{st}, s{st}, {self.nt*2*PLS}
            s_add_u32 s{st}, s{st}, {self.lds_b}
            v_lshrrev_b32 v{vb}, 7, v{V_BOFF}
            v_lshlrev_b32 v{vb}, 5, v{vb}
            v_and_b32 v{vb+1}, 31, v{V_BOFF}
            v_add3_u32 v{vb}, v{vb}, v{vb+1}, s{st}
            v_bfe_u32 v{vb+1}, v{L}, 4, 1
            v_mul_u32_u24 v{vb+1}, {PLS}, v{vb+1}
            v_add_u32 v{vb}, v{vb}, v{vb+1}
            """)
        for j in range(0 if self.bblk else self.nt):
            a(f"s_and_b32 s{st}, s{self.s_wave}, 1")
            if not self.jmaj:
                a(f"s_mul_i32 s{st}, s{st}, {self.nt}")
            if j:
                a(f"s_add_u32 s{st}, s{st}, {2*j if self.jmaj else j}")
            a(f"s_and_b32 s{st+1}, s{st}, 1")
            a(f"s_lshl_b32 s{st+1}, s{st+1}, 6")
            a(f"s_lshr_b32 s{st}, s{st}, 1")
            a(f"s_lshl_b32 s{st}, s{st}, 12")
            a(f"s_add_u32 s{st}, s{st}, {self.lds_b}")
            if self.st:
                a(f"s_add_u32 s{st}, s{st}, s{st+2}")
            a(f"v_xor_b32 v{self.vb+j}, s{st+1}, v{V_BOFF}")
            a(f"v_add_u32 v{self.vb+j}, s{st}, v{self.vb+j}")
            if self.st:
                a(f"v_xor_b32 v{self.st['vb1']+j}, 2048, v{self.vb+j}")
        if self.st:
            for r in self.st["rows"]:
                a(f"v_mov_b32 v{r}, 0")
                a(f"v_mov_b32 v{r+1}, 0")
            for r in range(self.st["cols"], self.st["cols"] + 4 * self.nt):
                a(f"v_mov_b32 v{r}, 0")
            sel = self.st["sel"]
            a(f"""
            v_bfe_u32 v{sel}, v{L}, 4, 1
            v_xor_b32 v{sel}, v{sel}, v{L}
            v_and_b32 v{sel}, 1, v{sel}
            v_add_u32 v{sel}, -1, v{sel}
            v_and_b32 v{sel}, 0x3f803f80, v{sel}
            v_mov_b32 v{sel+1}, v{sel}
            v_mov_b32 v{sel+2}, v{sel}
            v_mov_b32 v{sel+3}, v{sel}
            """)

    def st_mfma(self, d, ksl):
        if not self.st:
            return []
        fa, fb = self._regs(d, ksl)
        sel = self.st["sel"]
        return [f"v_mfma_f32_16x16x32_bf16 v[{self.st['cols']+4*j}:{self.st['cols']+4*j+3}], v[{fb+4*j}:{fb+4*j+3}], v[{sel}:{sel+3}], v[{self.st['cols']+4*j}:{self.st['cols']+4*j+3}]"
                for j in range(self.nt) if (j & 1) == ksl]

    def st_valu(self, d, ksl):
        if not self.st:
            return []
        fa, fb = self._regs(d, ksl)
        t0, t1 = self.st["tmp"]
        out = []
        for i in range(self.mt):
            if ((i + 1) & 1) == ksl:
                r = self.st["rows"][i]
                for q in range(4):
                    x = fa + 4 * i + q
                    out += [f"v_lshlrev_b32 v{t0}, 16, v{x}", f"v_and_b32 v{t1}, 0xffff0000, v{x}",
                            f"v_add_f32 v{r}, v{r}, v{t0}", f"v_fmac_f32 v{r+1}, v{t0}, v{t0}",
                            f"v_add_f32 v{r}, v{r}, v{t1}", f"v_fmac_f32 v{r+1}, v{t1}, v{t1}"]
        return out

    def _regs(self, d, ksl):
        if self.G == 2:
            base = self.fr + (d & 1) * self.FS
            return base + ksl * self.mt * 4, base + 8 * self.mt + ksl * self.nt * 4
        base = self.fr + ksl * self.FS
        return base, base + 4 * self.mt

    def reads(self, d, ksl):
        sa, sb = (d >> 1) % self.NA, d % self.NBB
        fa, fb = self._regs(d, ksl)
        ra = [f"ds_read_b128 v[{fa+4*i}:{fa+4*i+3}], v{self.va + 2*(d&1) + ksl} offset:{sa*self.AB + i*4096}" for i in range(self.mt)]
        if self.ablk:
            ra = [f"ds_read_b128 v[{fa+4*i}:{fa+4*i+3}], v{self.va} offset:{sa*self.AB + (2*(d&1)+ksl)*self.BM*32 + i*1024}" for i in range(self.mt)]
        if self.bblk:
            rb = [f"ds_read_b64_tr_b16 v[{fb+4*j+2*t}:{fb+4*j+2*t+1}], v{self.vb} offset:{sb*self.BB + j*2*PLS + (16*ksl+4*t)*32}"
                  for j in range(self.nt) for t in range(2)]
        elif self.st:
            vb = self.st["vb1"] if ksl else self.vb
            rb = [f"ds_read_b64_tr_b16 v[{fb+4*j+2*t}:{fb+4*j+2*t+1}], v{vb+j} offset:{sb*self.BB + 4*t*128}"
                  for j in range(self.nt) for t in range(2)]
        else:
            rb = [f"ds_read_b64_tr_b16 v[{fb+4*j+2*t}:{fb+4*j+2*t+1}], v{self.vb+j} offset:{sb*self.BB + (16*ksl+4*t)*128}"
                  for j in range(self.nt) for t in range(2)]
        return [ra[0]] + rb[:2] + ra[1:] + rb[2:]

    def mfmas(self, d, ksl):
        fa, fb = self._regs(d, ksl)
        out = []
        for j in range(self.nt):
            for i in range(self.mt):
                dd = self.acc + (j * self.mt + i) * 16
                out.append(f"v_mfma_f32_32x32x16_bf16 v[{dd}:{dd+15}], v[{fb+4*j}:{fb+4*j+3}], v[{fa+4*i}:{fa+4*i+3}], v[{dd}:{dd+15}]")
        return out

    def zero_acc(self):
        for r in range(self.acc, self.acc + self.mt * self.nt * 16):
            self.a(f"v_mov_b32 v{r}, 0")

    def _loop(self, n, step, tag):
        a, P = self.a, self.period
        if n <= 0:
            return
        if n <= P:
            for d in range(n):
                step(d)
            return
        iters = (n + P - 1) // P
        uex = (n - 1) % P
        a(f"s_mov_b32 s{self.s_it}, 0")
        a(f"{self.name}_{tag}_LOOP:")
        for u in range(P):
            step(u)
            if u == uex:
                a(f"s_add_u32 s{self.s_it}, s{self.s_it}, 1")
                a(f"s_cmp_lt_u32 s{self.s_it}, {iters}")
                if u == P - 1:
                    a(f"s_cbranch_scc1 {self.name}_{tag}_LOOP")
                else:
                    a(f"s_cbranch_scc0 {self.name}_{tag}_DONE")
        if uex != P - 1:
            a(f"s_branch {self.name}_{tag}_LOOP")
            a(f"{self.name}_{tag}_DONE:")

    def c_run(self, per=4, after_first=None):
        a = self.a
        a("s_barrier")
        if after_first:
            after_first()
        prof = self.name in os.environ.get("PROF", "").split(",")
        def tick(acc):
            if prof:
                a("s_memtime s[0:1]")
                a("s_waitcnt lgkmcnt(0)")
                if acc is not None:
                    a("s_sub_u32 s11, s0, s11")
                    a(f"s_add_u32 s{acc}, s{acc}, s11")
                a("s_mov_b32 s11, s0")
        if prof:
            a("s_mov_b32 s64, 0\ns_mov_b32 s65, 0\ns_mov_b32 s10, 0")
        tick(None)
        mt, nt = self.mt, self.nt
        def rkeys(d, ksl):
            ka = [("a", d, ksl, i) for i in range(mt)]
            kb = [("b", d, ksl, j) for j in range(nt) for t in range(2)]
            return list(zip([ka[0]] + kb[:2] + ka[1:] + kb[2:], self.reads(d, ksl)))
        def mitems(d, ksl):
            out = [([("a", d, ksl, i), ("b", d, ksl, j)], m) for (j, i), m in
                   zip([(j, i) for j in range(nt) for i in range(mt)], self.mfmas(d, ksl))]
            out += [([("b", d, ksl, j)], m) for j, m in zip([j for j in range(nt) if (j & 1) == ksl], self.st_mfma(d, ksl))]
            return out
        def vitems(d, ksl):
            ii = [i for i in range(mt) if ((i + 1) & 1) == ksl]
            return [([("a", d, ksl, ii[0])], v) for v in self.st_valu(d, ksl)]
        issued, done = [], [-1]
        def R(x):
            issued.append(x[0]); a(x[1])
        def X(x):
            idx = max(max(p for p, k in enumerate(issued) if k == n) for n in x[0])
            if idx > done[0]:
                n = min(len(issued) - 1 - idx, 15)
                a(f"s_waitcnt lgkmcnt({n})")
                done[0] = len(issued) - 1 - n
            a(x[1])
        def BAR():
            if done[0] < len(issued) - 1:
                a("s_waitcnt lgkmcnt(0)")
                done[0] = len(issued) - 1
            tick(64)
            a("s_barrier")
            tick(65)
        def spread(ms, rs, vs, lead=0):
            rs, vs = list(rs), list(vs)
            for _ in range(lead):
                R(rs.pop(0))
            n = len(ms)
            for k, m in enumerate(ms):
                X(m)
                for _ in range(-(-len(rs) // (n - k)) + (1 if k == 0 and not lead and len(rs) % n else 0)):
                    if rs:
                        R(rs.pop(0))
                for _ in range(-(-len(vs) // (n - k))):
                    X(vs.pop(0))
        def start(pre):
            del issued[:]
            issued.extend(k for k, _ in pre)
            done[0] = -1
        if self.G == 2:
            assert self.SS
            rd2 = lambda d: rkeys(d, 0) + rkeys(d, 1)
            mf2 = lambda d: mitems(d, 0) + mitems(d, 1)
            for r in rd2(0):
                R(r)
            def step(u):
                start(rd2(2 * u))
                spread(mf2(2 * u), rd2(2 * u + 1), [])
                ms = mf2(2 * u + 1)
                h = len(ms) // 2
                for m in ms[:h]:
                    X(m)
                BAR()
                spread(ms[h:], rd2(2 * u + 2), [], lead=3)
            self._loop(self.ND // 2, step, "C")
        else:
            for r in rkeys(0, 0):
                R(r)
            def step(d):
                start(rkeys(d, 0))
                spread(mitems(d, 0), rkeys(d, 1), vitems(d, 0))
                ms = mitems(d, 1)
                spread(ms[:2], [], vitems(d, 1))
                BAR()
                spread(ms[2:], rkeys(d + 1, 0), [], lead=3)
            self._loop(self.ND, step, "C")

    def l_setup_a(self, vda, lda, vt):
        a, st, qa = self.a, self.s_tmp, self.qa
        L = V_LANE
        assert (lda is None) == self.ablk
        a(f"s_mul_i32 s{self.s_ma}, s{self.s_lw}, {qa*1024}")
        if lda:
            self.vda = [vda + i for i in range(qa)]
            a(f"s_mul_i32 s{st}, s{self.s_lw}, {8*qa*lda}")
            a(f"s_mov_b32 s{st+1}, {lda}")
            a(f"v_lshlrev_b32 v{vt}, 4, v{V_CHA}")
            a(f"v_mad_u32_u24 v{vt}, v{V_ROW}, s{st+1}, v{vt}")
            a(f"v_add_u32 v{vt}, s{st}, v{vt}")
            a(f"v_xor_b32 v{vt+1}, 64, v{vt}")
            self.ka_step = 128
            assert qa % 2 == 0
            for i in range(qa):
                a(f"v_add_u32 v{vda+i}, {8*i*lda - i*1024}, v{vt + (i & 1)}")
        else:
            self.vda = [vda] * qa
            a(f"""
            s_lshl_b32 s{st}, s{self.s_lw}, 16
            v_bfe_u32 v{vt}, v{L}, 4, 1
            v_xor_b32 v{vt}, v{vt}, v{L}
            v_lshlrev_b32 v{vt}, 4, v{vt}
            v_add_u32 v{vda}, s{st}, v{vt}
            """)
            self.ka_step = 4 * PL

    def l_setup_b(self, vdb, ldb, vt, pstride=128):
        a, st, qb = self.a, self.s_tmp, self.qb
        L = V_LANE
        self.vdb = vdb
        assert (ldb is None) == self.bblk
        if not ldb:
            self.b_imm = PLS
            self.kb_step = 32 * 32
            a(f"s_mul_i32 s{self.s_mb}, s{self.s_lw}, {qb*PLS}")
            a(f"s_mul_i32 s{st}, s{self.s_lw}, {qb*PL}")
            a(f"v_lshlrev_b32 v{vt}, 4, v{L}")
            a(f"v_add_u32 v{vdb}, s{st}, v{vt}")
            for i in range(1, qb):
                a(f"v_add_u32 v{vdb+i}, {i*(PL-PLS)}, v{vdb}")
            return
        a(f"s_mul_i32 s{self.s_mb}, s{self.s_lw}, {qb*1024}")
        a(f"s_mov_b32 s{st+1}, {ldb}")
        a(f"v_lshlrev_b32 v{vt}, 4, v{V_CHB}")
        a(f"v_mad_u32_u24 v{vt}, v{V_ROW}, s{st+1}, v{vt}")
        eb, pb = 8 * ldb, pstride
        self.kb_step = 32 * ldb
        self.b_imm = 0 if qb == 3 else 1024
        for i in range(qb):
            a(f"s_mul_i32 s{st}, s{self.s_lw}, {qb}")
            if i:
                a(f"s_add_u32 s{st}, s{st}, {i}")
            a(f"s_and_b32 s{st+1}, s{st}, 3")
            a(f"s_mul_i32 s{st+1}, s{st+1}, {eb}")
            a(f"s_lshr_b32 s{st}, s{st}, 2")
            a(f"s_mul_i32 s{st}, s{st}, {pb}")
            a(f"s_add_u32 s{st}, s{st}, s{st+1}")
            if i * self.b_imm:
                a(f"s_sub_u32 s{st}, s{st}, {i * self.b_imm}")
            a(f"v_add_u32 v{vdb+i}, s{st}, v{vt}")

    def l_bind(self, srdA, srdB, s_ka, s_kb):
        self.srdA, self.srdB, self.s_ka, self.s_kb = srdA, srdB, s_ka, s_kb

    def l_rot(self, s_rot, win=0):
        a, st = self.a, self.s_tmp
        self.win = win
        if win:
            a(f"""
            s_mov_b32 s{S_KA0}, s{self.s_ka}
            s_mov_b32 s{S_KB0}, s{self.s_kb}
            s_mov_b32 s{S_KA1}, 0
            s_mov_b32 s{S_KB1}, 0
            s_mov_b32 s{S_ROT}, s{s_rot}
            """)
        else:
            a(f"""
            s_mov_b32 s{S_KA0}, s{self.s_ka}
            s_add_u32 s{S_KA1}, s{self.s_ka}, {(self.ND//2)*self.ka_step}
            s_mov_b32 s{S_KB0}, s{self.s_kb}
            s_add_u32 s{S_KB1}, s{self.s_kb}, {self.ND*self.kb_step}
            """)
        a(f"""
        s_mul_i32 s{st+1}, s{s_rot}, {self.ka_step}
        s_add_u32 s{self.s_ka}, s{self.s_ka}, s{st+1}
        s_mul_i32 s{st+1}, s{s_rot}, {2*self.kb_step}
        s_add_u32 s{self.s_kb}, s{self.s_kb}, s{st+1}
        """)

    def _adv(self, k, k0, k1, step, mul):
        a = self.a
        if self.win:
            w = self.win * mul - 1
            a(f"s_add_u32 s{k1}, s{k1}, 1")
            if mul == 2:
                a(f"s_lshl1_add_u32 s{k}, s{S_ROT}, s{k1}")
            else:
                a(f"s_add_u32 s{k}, s{S_ROT}, s{k1}")
            a(f"s_and_b32 s{k}, s{k}, {w}")
            a(f"s_andn2_b32 s{S_RT}, s{k1}, {w}")
            a(f"s_or_b32 s{k}, s{k}, s{S_RT}")
            a(f"s_mul_i32 s{k}, s{k}, {step}")
            a(f"s_add_u32 s{k}, s{k}, s{k0}")
        else:
            a(f"s_add_u32 s{k}, s{k}, {step}")
            a(f"s_cmp_eq_u32 s{k}, s{k1}")
            a(f"s_cselect_b32 s{k}, s{k0}, s{k}")

    def issue_a(self, u):
        a = self.a
        a(f"s_add_u32 m0, s{self.s_ma}, {self.lds_a + (u % self.NA) * self.AB}")
        for i in range(self.qa):
            a(f"buffer_load_dwordx4 v{self.vda[i]}, s[{self.srdA}:{self.srdA+3}], s{self.s_ka} offen offset:{i*1024} lds")
        self._adv(self.s_ka, S_KA0, S_KA1, self.ka_step, 1)

    def issue_b(self, d):
        a = self.a
        if d in self.breg:
            a(f"ds_write_b128 v{self.vlds}, v[{self.breg[d]}:{self.breg[d]+3}] offset:{(d % self.NBB) * self.BB}")
            if len(self.breg) == self.ND:
                return
        for i in range(0 if d in self.breg else self.qb):
            if i == 0 or not self.b_imm:
                a(f"s_add_u32 m0, s{self.s_mb}, {self.lds_b + (d % self.NBB) * self.BB + i*1024}")
            a(f"buffer_load_dwordx4 v{self.vdb+i}, s[{self.srdB}:{self.srdB+3}], s{self.s_kb} offen offset:{i*self.b_imm} lds")
        self._adv(self.s_kb, S_KB0, S_KB1, self.kb_step, 2)

    def pro_order(self, which="ab"):
        out = []
        nau, nbu = min(self.NA, self.ND // 2), min(self.NBB, self.ND)
        for d in range(max(2 * nau, nbu)):
            if d % 2 == 0 and d // 2 < nau and "a" in which:
                out.append(("a", d // 2))
            if d < nbu and "b" in which:
                out.append(("b", d))
        return out

    def l_issue(self, lst):
        for k, i in lst:
            (self.issue_a if k == "a" else self.issue_b)(i)

    def l_run(self, order, work=None, late=(), extra=None):
        a, ND = self.a, self.ND
        seq = []
        def add(k, i):
            if k == "b" and i in self.breg:
                return
            seq.extend([(k, i)] * (self.qa if k == "a" else self.qb))
        for k, i in order:
            add(k, i)
        NS = ND // 2 if self.SS else ND
        def cnt(d):
            need = [("a", d), ("b", 2 * d), ("b", 2 * d + 1)] if self.SS else [("a", d >> 1), ("b", d)]
            need = [n for n in need if not (n[0] == "b" and n[1] in self.breg)]
            idx = max(max(p for p, t in enumerate(seq) if t == n) for n in need)
            return len(seq) - 1 - idx
        LG = " lgkmcnt(0)" if self.breg else ""
        assert not self.breg or self.period >= NS
        waits = {-1: cnt(0)}
        for k, i in late:
            add(k, i)
        plan = {}
        for d in range(NS):
            waits[d] = cnt(d + 1) if d + 1 < NS else None
            pl = []
            if self.SS:
                if d + self.NA < NS:
                    pl.append(("a", d + self.NA))
                if 2 * d + self.NBB < ND:
                    pl += [("b", 2 * d + self.NBB), ("b", 2 * d + 1 + self.NBB)]
            else:
                if d % 2 == 1 and (d >> 1) + self.NA < ND // 2:
                    pl.append(("a", (d >> 1) + self.NA))
                if d + self.NBB < ND:
                    pl.append(("b", d + self.NBB))
            plan[d] = pl
            for k, i in pl:
                add(k, i)
            if extra and extra[0] == d:
                seq.extend([("x", 0)] * (extra[2] if len(extra) > 2 else 1))
        def full(d):
            return len(plan[d]) == (3 if self.SS else 2 if d % 2 else 1)
        nmain = 0
        while nmain < NS and full(nmain):
            nmain += 1
        assert not extra or extra[0] >= nmain
        P = self.period
        wmin = {}
        for d in range(nmain):
            wmin[d % P] = min(wmin.get(d % P, 63), waits[d], 63)
        a(f"s_waitcnt vmcnt({min(waits[-1], 63)}){LG}")
        a("s_barrier")
        self.l_issue(late)
        prof = self.name in os.environ.get("PROF", "").split(",")
        trace = self.name in os.environ.get("TRACE", "").split(",")
        def tick(acc):
            if prof:
                a("s_memtime s[0:1]")
                a("s_waitcnt lgkmcnt(0)")
                if acc is not None:
                    a("s_sub_u32 s11, s0, s11")
                    a(f"s_add_u32 s{acc}, s{acc}, s11")
                a("s_mov_b32 s11, s0")
            if trace:
                a("s_memrealtime s[0:1]")
                a("s_waitcnt lgkmcnt(0)")
                a(f"v_cmp_eq_u32 vcc, s10, v{V_LANE}")
                a("v_mov_b32 v126, s0")
                a("v_cndmask_b32 v127, v127, v126, vcc")
                a("s_add_u32 s10, s10, 1")
        if prof:
            a("s_mov_b32 s64, 0\ns_mov_b32 s65, 0\ns_mov_b32 s10, 0")
        if trace:
            a("s_mov_b32 s10, 0\nv_mov_b32 v127, 0")
        tick(None)
        def step(u):
            a(f"s_waitcnt vmcnt({wmin[u]}){LG}")
            tick(64)
            a("s_barrier")
            tick(65)
            self.l_issue(plan[u])
            tick(10)
        self._loop(nmain, step, "L")
        for d in range(nmain, NS):
            if waits[d] is not None:
                a(f"s_waitcnt vmcnt({min(waits[d], 63)}){LG}")
            if trace: tick(64)
            a("s_barrier")
            if trace: tick(65)
            self.l_issue(plan[d])
            if extra and extra[0] == d:
                extra[1]()
            if trace: tick(10)
        if trace:
            a(f"""
            s_lshl_b32 s0, s2, 3
            s_add_u32 s0, s0, s{self.s_wave}
            s_lshl_b32 s0, s0, 8
            s_add_u32 s0, s0, {WS_STAMP + (1 << 20)}
            v_lshlrev_b32 v126, 2, v{V_LANE}
            buffer_store_dword v127, v126, s[28:31], s0 offen
            """)
```

```python
from common import *
from g2 import *
import sys

TOFF = float(os.environ.get("TOFF", "100"))
LLIM = 2.0 ** 110
S_X, S_WQKV, S_WO, S_WIN, S_WSP, S_BSP, S_WOUT, S_OUT, S_DBG, S_WS = 4, 6, 8, 12, 14, 16, 18, 20, 22, 24
R_WS, R_A, R_B, R_M = 28, 32, 36, 40
S_IDX, S_WAVE, S_P0, S_P1, S_P2, S_P3, S_LW, S_KA, S_KB, S_IT, S_OK, S_T = 3, 44, 45, 46, 47, 48, 49, 50, 51, 52, 53, 54
S_MA, S_MB = 26, 27
L = V_LANE
LDS_V, LDS_K, LDS_ONES, LDS_VOTE = 0, 32768, 65536, 65536 + 8704
LDS_STA = 74752
LDS_STB, LDS_LNS, LDS_LNQ = 65536, 32768, 36864
S_ONE = 63
POLL_MAX = 20000
PF = int(os.environ.get('PF', '0'))
LDS_DUMMY = 79872
HP = int(os.environ.get('HP', '3'))
NA1 = int(os.environ.get('NA1', '2'))
ROT = int(os.environ.get('ROT', '1'))
OPT = int(os.environ.get('OPT', '1'))
XL = int(os.environ.get('XL', '0'))
SC = '' if XL == 2 else ' sc1'
GK = dict(s_wave=S_WAVE, s_tmp=S_T, s_it=S_IT, s_lw=S_LW, s_ma=S_MA, s_mb=S_MB)

def poll(a, lbl, rsrd, voff, soff, expect, vt, inv=True):
    a(f"""
    s_mov_b32 s{S_T+8}, 0
    {lbl}_P:
    buffer_load_dword v{vt}, v{voff}, s[{rsrd}:{rsrd+3}], {soff} offen sc1
    s_waitcnt vmcnt(0)
    v_cmp_ne_u32 vcc, {expect}, v{vt}
    s_add_u32 s{S_T+8}, s{S_T+8}, 1
    s_cmp_gt_u32 s{S_T+8}, {POLL_MAX}
    s_cbranch_scc1 {lbl}_X
    s_cbranch_vccz {lbl}_X
    s_sleep 1
    s_branch {lbl}_P
    {lbl}_X:
    """)
    if inv and os.environ.get('INV', '0') == '1':
        a("buffer_inv sc1")
        a("s_waitcnt vmcnt(0)")

def signal(a, s_cnt, vt):
    a(f"""
    s_lshl_b32 s{S_T+8}, s{s_cnt}, 8
    s_add_u32 s{S_T+8}, s{S_T+8}, {WS_CNT}
    v_mov_b32 v{vt}, 1
    v_mov_b32 v{vt+1}, 0
    s_mov_b64 exec, 1
    buffer_atomic_add v{vt}, v{vt+1}, s[{R_WS}:{R_WS+3}], s{S_T+8} offen sc1
    s_mov_b64 exec, -1
    """)

VZ0, VZF = 6, 7

def z0_issue(a):
    srd(a, R_M, S_DBG, S_DBG + 1, 256)
    a(f"buffer_load_dword v{VZF}, v{VZ0}, s[{R_M}:{R_M+3}], 0 offen sc1")

def z0_check(a, lbl):
    a(f"""
    v_cmp_ne_u32 vcc, 1, v{VZF}
    s_nop 4
    s_cbranch_vccz {lbl}_ZOK
    """)
    poll(a, f"{lbl}_Z", R_M, VZ0, 0, 1, VZF, inv=False)
    a(f"{lbl}_ZOK:")

def interleave(a, lists):
    n = max(len(l) for l in lists)
    for q in range(n):
        for l in lists:
            if q < len(l):
                a(l[q])

def bf16r_l(dst, src):
    return [f"v_cvt_pk_bf16_f32 v{dst}, v{src}, v{src}", f"v_lshlrev_b32 v{dst}, 16, v{dst}"]

def rank1(a, g, lds_st, RD, TA, PR, CO, TC):
    mt, nt = g.mt, g.nt
    FB = g.fr
    FA = g.fr + 4 * mt
    RSZ = g.BM * 32
    rows, cols = g.st["rows"], g.st["cols"]
    a(f"""
    s_lshr_b32 s{S_T}, s{S_WAVE}, 1
    s_and_b32 s{S_T+1}, s{S_WAVE}, 1
    s_mul_i32 s{S_T+2}, s{S_T}, {mt*1024}
    s_add_u32 s{S_T+2}, s{S_T+2}, {lds_st}
    s_lshl_b32 s{S_T+3}, s{S_T+1}, 4
    s_mul_i32 s{S_T+1}, s{S_T+1}, {nt*256}
    s_add_u32 s{S_T+1}, s{S_T+1}, {lds_st + RSZ}
    s_lshl_b32 s{S_T}, s{S_T}, 7
    s_add_u32 s{S_T}, s{S_T}, s{S_T+1}
    v_and_b32 v{TA}, 31, v{L}
    v_lshlrev_b32 v{TA}, 5, v{TA}
    v_add_u32 v{TA}, s{S_T+2}, v{TA}
    v_lshrrev_b32 v{TA+2}, 5, v{L}
    v_lshl_add_u32 v{TA+2}, v{TA+2}, 3, v{TA}
    v_add_u32 v{TA+2}, s{S_T+3}, v{TA+2}
    """)
    for i in range(mt):
        a(f"ds_write_b64 v{TA+2}, v[{rows[i]}:{rows[i]+1}] offset:{i*1024}")
    a(f"""
    v_and_b32 v{TA+1}, 1, v{L}
    v_lshlrev_b32 v{TA+1}, 6, v{TA+1}
    v_and_b32 v{TA+2}, 48, v{L}
    v_add3_u32 v{TA+1}, v{TA+1}, v{TA+2}, s{S_T}
    s_mov_b32 exec_lo, 0x30003
    s_mov_b32 exec_hi, 0x30003
    """)
    for j in range(nt):
        a(f"ds_write_b128 v{TA+1}, v[{cols+4*j}:{cols+4*j+3}] offset:{j*256}")
    a(f"""
    s_mov_b64 exec, -1
    s_waitcnt lgkmcnt(0)
    v_lshlrev_b32 v{TA+1}, 2, v{L}
    v_add_u32 v{TA+1}, s{S_T+1}, v{TA+1}
    s_barrier
    """)
    for i in range(mt):
        a(f"ds_read_b128 v[{PR+8*i}:{PR+8*i+3}], v{TA} offset:{i*1024}")
        a(f"ds_read_b128 v[{PR+8*i+4}:{PR+8*i+7}], v{TA} offset:{i*1024+16}")
    for j in range(nt):
        a(f"ds_read_b32 v{CO+j}, v{TA+1} offset:{j*256}")
    for i in range(mt):
        a(f"v_mov_b32 v{FB+4*i+2}, 0")
        a(f"v_mov_b32 v{FB+4*i+3}, 0")
    for j in range(nt):
        a(f"v_mov_b32 v{FA+4*j+2}, 0")
        a(f"v_mov_b32 v{FA+4*j+3}, 0")
    a("s_waitcnt lgkmcnt(0)")
    l1, l2 = [], []
    for i in range(mt):
        c, b, q = PR + 8 * i, FB + 4 * i, PR + 8 * i + 1
        l1.append([f"v_add_f32 v{c}, v{c}, v{c+2}",
                   f"v_add_f32 v{c+4}, v{c+4}, v{c+6}",
                   f"v_add_f32 v{c}, v{c}, v{c+4}",
                   f"v_mul_f32 v{c}, {f32(1.0/512)}, v{c}",
                   f"v_cvt_pk_bf16_f32 v{b}, -v{c}, -v{c}",
                   f"v_cvt_pk_bf16_f32 v{b+1}, -v{c}, -v{c}"])
        l2.append([f"v_add_f32 v{q}, v{q}, v{q+2}",
                   f"v_add_f32 v{q+4}, v{q+4}, v{q+6}",
                   f"v_add_f32 v{q}, v{q}, v{q+4}",
                   f"v_mul_f32 v{q}, {f32(1.0/512)}, v{q}",
                   f"v_fma_f32 v{q}, -v{c}, v{c}, v{q}",
                   f"v_max_f32 v{q}, 0, v{q}"] + bf16r_l(q, q) + [f"v_add_f32 v{q}, {f32(1e-5)}, v{q}"] + bf16r_l(q, q) +
                  [f"v_sqrt_f32 v{q}, v{q}"] + bf16r_l(q, q) + [f"v_rcp_f32 v{RD+i}, v{q}"])
    for j in range(nt):
        c, d, C = CO + j, FA + 4 * j, TC + 3 * j
        l1.append([f"v_cvt_pk_bf16_f32 v{C}, v{c}, v{c}",
                   f"v_lshlrev_b32 v{C}, 16, v{C}",
                   f"v_sub_f32 v{C+1}, v{c}, v{C}",
                   f"v_cvt_pk_bf16_f32 v{d}, v{C}, v{C+1}",
                   f"v_and_b32 v{C+2}, 0xffff0000, v{d}",
                   f"v_sub_f32 v{C+1}, v{C+1}, v{C+2}",
                   f"v_cvt_pk_bf16_f32 v{d+1}, v{C+1}, 0"])
    interleave(a, l1)
    for j in range(nt):
        for i in range(mt):
            dd = g.acc + (j * mt + i) * 16
            a(f"v_mfma_f32_32x32x16_bf16 v[{dd}:{dd+15}], v[{FA+4*j}:{FA+4*j+3}], v[{FB+4*i}:{FB+4*i+3}], v[{dd}:{dd+15}]")
    interleave(a, l2)

def gA1(a):
    return G2(a, "A1", BM=64, NT=6, mt=1, nt=3, NA=NA1, NBB=4, ND=16, lds_a=0, lds_b=NA1*8192, acc=16, fr=64, va=4, vb=8,
              G=1, st=dict(vb1=11, rows=[112], cols=96, sel=108, tmp=(114, 115)), **GK)

def a_params(a):
    if XL:
        a(f"""
        s_lshr_b32 s{S_P0}, s{S_IDX}, 3
        s_and_b32 s{S_P1}, s{S_IDX}, 7
        """)
    else:
        a(f"""
        s_bfe_u32 s{S_P0}, s{S_IDX}, 0x20001
        s_lshl_b32 s{S_P0}, s{S_P0}, 3
        s_bfe_u32 s{S_T}, s{S_IDX}, 0x30003
        s_add_u32 s{S_P0}, s{S_P0}, s{S_T}
        s_and_b32 s{S_P1}, s{S_IDX}, 1
        s_lshl_b32 s{S_P1}, s{S_P1}, 2
        s_lshr_b32 s{S_T}, s{S_IDX}, 6
        s_add_u32 s{S_P1}, s{S_P1}, s{S_T}
        """)
    a(f"""
    s_and_b32 s{S_P2}, s{S_IDX}, 7
    s_lshl_b32 s{S_P2}, s{S_P2}, 2
    s_bfe_u32 s{S_T}, s{S_IDX}, 0x20003
    s_add_u32 s{S_P2}, s{S_P2}, s{S_T}
    s_lshr_b32 s{S_P3}, s{S_IDX}, 5
    """)

def a_loader(a):
    g = gA1(a)
    a(f"s_setprio {os.environ.get('PAL', '3')}")
    loader_lane_setup(a, 60)
    g.l_setup_a(8, 1024, 60)
    g.l_setup_b(12, 3072, 60, pstride=1024)
    g.l_bind(R_A, R_B, S_KA, S_KB)
    a(f"""
    v_mov_b32 v{VZ0}, 0
    s_lshl_b32 s{S_KA}, s{S_P0}, 16
    s_lshl_b32 s{S_KB}, s{S_P1}, 7
    s_lshl1_add_u32 s{S_T}, s{S_P1}, s{S_P0}
    s_and_b32 s{S_T}, s{S_T}, {7*ROT}
    """)
    g.l_rot(S_T)
    a("s_waitcnt lgkmcnt(0)")
    srd(a, R_A, S_X, S_X + 1, 2048 * 1024)
    srd(a, R_B, S_WQKV, S_WQKV + 1, 512 * 3072)
    order = g.pro_order()
    g.l_issue(order[:HP])
    srd(a, R_WS, S_WS, S_WS + 1, WS_END)
    stamp(a, 1)
    g.l_run(order[:HP], late=order[HP:])
    z0_issue(a)
    a(f"""
    v_mov_b32 v64, 0x3f80
    v_mov_b32 v65, 0
    v_mov_b32 v66, 0
    v_mov_b32 v67, 0
    v_lshlrev_b32 v68, 4, v0
    v_add_u32 v68, {LDS_ONES - 4096}, v68
    ds_write_b128 v68, v[64:67]
    ds_write_b128 v68, v[64:67] offset:4096
    ds_write_b128 v68, v[64:67] offset:4608
    s_waitcnt lgkmcnt(0)
    """)
    a("s_barrier")
    stamp(a, 2)
    a(f"""
    v_and_b32 v62, 1, v{L}
    v_lshlrev_b32 v62, 8, v62
    s_lshl_b32 s{S_T+1}, s{S_P1}, 1
    s_and_b32 s{S_T}, s{S_P0}, 1
    s_add_u32 s{S_T}, s{S_T}, s{S_T+1}
    s_and_b32 s{S_T+1}, s{S_IDX}, 7
    s_lshl_b32 s{S_T+1}, s{S_T+1}, 9
    s_add_u32 s{S_T+1}, s{S_T+1}, {WS_CNT + C_S1*256}
    s_waitcnt vmcnt(0)
    s_barrier
    s_cmp_eq_u32 s{S_LW}, 0
    s_cbranch_scc0 AT_START
    """)
    stamp(a, 3)
    z0_check(a, "AL")
    if XL == 2:
        a(f"""
        s_lshl_b32 s{S_T+8}, s{S_T}, 8
        s_add_u32 s{S_T+8}, s{S_T+8}, {WS_CNT}
        v_mov_b32 v60, 1
        v_mov_b32 v61, 0
        s_mov_b64 exec, 1
        buffer_atomic_add v60, v61, s[{R_WS}:{R_WS+3}], s{S_T+8} offen
        s_mov_b64 exec, 3
        s_mov_b32 s{S_T+8}, 0
        AL_S1_P:
        v_mov_b32 v60, 0
        buffer_atomic_add v60, v62, s[{R_WS}:{R_WS+3}], s{S_T+1} offen sc0
        s_waitcnt vmcnt(0)
        v_cmp_ne_u32 vcc, 16, v60
        s_add_u32 s{S_T+8}, s{S_T+8}, 1
        s_cmp_gt_u32 s{S_T+8}, {POLL_MAX}
        s_cbranch_scc1 AL_S1_X
        s_cbranch_vccz AL_S1_X
        s_sleep 1
        s_branch AL_S1_P
        AL_S1_X:
        s_mov_b64 exec, -1
        """)
    else:
        signal(a, S_T, 60)
        poll(a, "AL_S1", R_WS, 62, f"s{S_T+1}", 16, 60)
    a("s_branch AT_START")

def a_compute(a):
    g = gA1(a)
    T = 80
    a(f"s_setprio {os.environ.get('PA1', '2')}")
    if PF:
        a(f"""
        v_lshlrev_b32 v{T+8}, 10, v{L}
        v_and_b32 v{T+9}, 15, v{L}
        v_mul_u32_u24 v{T+9}, 3072, v{T+9}
        v_lshrrev_b32 v{T+10}, 4, v{L}
        v_min_u32 v{T+10}, 2, v{T+10}
        v_lshl_add_u32 v{T+9}, v{T+10}, 10, v{T+9}
        s_lshl_b32 s{S_T}, s{S_P0}, 16
        s_lshl_b32 s{S_T+1}, s{S_WAVE}, 8
        s_add_u32 s{S_T}, s{S_T}, s{S_T+1}
        s_mul_i32 s{S_T+1}, s{S_P0}, {16*3072}
        s_lshl_b32 s{S_T+2}, s{S_P1}, 7
        s_add_u32 s{S_T+1}, s{S_T+1}, s{S_T+2}
        s_mov_b32 m0, {LDS_DUMMY}
        s_cmp_eq_u32 s{S_WAVE}, 3
        s_waitcnt lgkmcnt(0)
        s_cbranch_scc1 AC_PFW
        """)
        srd(a, R_A, S_X, S_X + 1, 2048 * 1024)
        for o in ([256, 384] if PF == 1 else [256, 320, 384, 448]):
            a(f"buffer_load_dword v{T+8}, s[{R_A}:{R_A+3}], s{S_T} offen offset:{o} lds")
        a("s_branch AC_PFD")
        a("AC_PFW:")
        srd(a, R_A, S_WQKV, S_WQKV + 1, 512 * 3072)
        for o in ([0] if PF == 1 else [0, 64]):
            a(f"buffer_load_dword v{T+9}, s[{R_A}:{R_A+3}], s{S_T+1} offen offset:{o} lds")
        a("AC_PFD:")
    compute_lane_setup(a, T + 8)
    g.c_setup()
    g.zero_acc()
    a("s_waitcnt lgkmcnt(0)")
    srd(a, R_WS, S_WS, S_WS + 1, WS_END)
    a(f"""
    s_or_b32 s{S_OK}, s{S_IDX}, s{S_WAVE}
    s_cmp_eq_u32 s{S_OK}, 0
    v_lshlrev_b32 v{T}, 8, v{L}
    v_mov_b32 v{T+1}, 0
    v_mov_b32 v{T+2}, 1
    s_cbranch_scc0 AC_NOZ
    s_mov_b32 s{S_T}, {WS_CNT}
    s_mov_b32 s{S_T+1}, {WS_CNT + 16384}
    buffer_store_dword v{T+1}, v{T}, s[{R_WS}:{R_WS+3}], s{S_T} offen sc1
    buffer_store_dword v{T+1}, v{T}, s[{R_WS}:{R_WS+3}], s{S_T+1} offen sc1
    AC_NOZ:
    """)
    srd(a, R_M, S_DBG, S_DBG + 1, 256)
    def flag():
        a(f"""
        s_cmp_eq_u32 s{S_OK}, 0
        s_cbranch_scc0 AC_NOZ2
        s_waitcnt vmcnt(0)
        s_mov_b64 exec, 1
        buffer_store_dword v{T+2}, v{T+1}, s[{R_M}:{R_M+3}], 0 offen sc1
        s_mov_b64 exec, -1
        AC_NOZ2:
        """)
    stamp(a, 1)
    g.c_run(per=7, after_first=flag)
    stamp(a, 2)
    RD = 14
    rank1(a, g, LDS_STA, RD, 108, 116, 96, 99)
    stamp(a, 3)
    a(f"""
    s_lshr_b32 s{S_T}, s{S_WAVE}, 1
    s_lshl_b32 s{S_T}, s{S_T}, 5
    s_lshl_b32 s{S_T+1}, s{S_P0}, 6
    s_add_u32 s{S_T}, s{S_T}, s{S_T+1}
    v_and_b32 v12, 31, v{L}
    v_add_u32 v12, s{S_T}, v12
    v_lshlrev_b32 v12, 5, v12
    v_lshrrev_b32 v13, 5, v{L}
    v_lshl_add_u32 v12, v13, 4, v12
    s_and_b32 s{S_T+1}, s{S_WAVE}, 1
    s_mul_i32 s{S_T+1}, s{S_T+1}, 3
    s_mov_b32 s{S_T+2}, {f32(QC)}
    s_mov_b32 s{S_T+3}, {f32(QC)}
    """)
    for j in range(3):
        d = g.acc + 16 * j
        o = 104 + 8 * j
        for p in range(8):
            r = d + 2 * p
            a(f"v_mul_f32 v{r}, v{r}, v{RD}")
            a(f"v_mul_f32 v{r+1}, v{r+1}, v{RD}")
            a(f"v_cvt_pk_bf16_f32 v{o+p}, v{r}, v{r+1}")
        a(f"""
        s_lshr_b32 s{S_T}, s{S_T+1}, 1
        s_lshl_b32 s{S_T}, s{S_T}, 3
        s_add_u32 s{S_T}, s{S_T}, s{S_P1}
        s_lshl_b32 s{S_T}, s{S_T}, 1
        s_and_b32 s{S_T+4}, s{S_T+1}, 1
        s_add_u32 s{S_T}, s{S_T}, s{S_T+4}
        s_lshl_b32 s{S_T+4}, s{S_T}, 17
        s_add_u32 s{S_T+5}, s{S_T+4}, 65536
        s_cmp_lt_u32 s{S_T}, 16
        s_cbranch_scc0 AC_NQ{j}
        """)
        for p in range(8):
            r = d + 2 * p
            a(f"v_lshlrev_b32 v{r}, 16, v{o+p}")
            a(f"v_and_b32 v{r+1}, 0xffff0000, v{o+p}")
            a(f"v_mul_f32 v{r}, s{S_T+2}, v{r}")
            a(f"v_mul_f32 v{r+1}, s{S_T+2}, v{r+1}")
            a(f"v_cvt_pk_bf16_f32 v{o+p}, v{r}, v{r+1}")
        a(f"""
        AC_NQ{j}:
        buffer_store_dwordx4 v[{o}:{o+3}], v12, s[{R_WS}:{R_WS+3}], s{S_T+4} offen{SC}
        buffer_store_dwordx4 v[{o+4}:{o+7}], v12, s[{R_WS}:{R_WS+3}], s{S_T+5} offen{SC}
        s_add_u32 s{S_T+1}, s{S_T+1}, 1
        """)
    a("s_waitcnt vmcnt(0)")
    a("s_barrier")
    attention(a)

def attention(a):
    S_C, S_MODE, S_M0 = S_IT, S_OK, S_MA
    VKA, VVA, VINC, VROW, VDK, VDV = 2, 3, 4, 5, 6, 7
    S_, P, O, C, Q, KF, VF, T = 16, 48, 56, 72, 88, 92, 100, 116
    a("AT_START:")
    a(f"""
    s_mov_b32 s{S_MODE}, 0
    v_and_b32 v{T}, 31, v{L}
    s_lshl_b32 s{S_T}, s{S_WAVE}, 5
    v_add_u32 v{T}, s{S_T}, v{T}
    v_lshlrev_b32 v{T}, 5, v{T}
    v_lshrrev_b32 v{T+1}, 5, v{L}
    v_lshl_add_u32 v{VROW}, v{T+1}, 4, v{T}
    v_lshrrev_b32 v{T}, 1, v{L}
    v_lshlrev_b32 v{T}, 5, v{T}
    v_bfe_u32 v{T+1}, v{L}, 4, 1
    v_xor_b32 v{T+1}, v{T+1}, v{L}
    v_and_b32 v{T+1}, 1, v{T+1}
    v_lshl_add_u32 v{VDK}, v{T+1}, 4, v{T}
    v_lshlrev_b32 v{VDV}, 4, v{L}
    v_add_u32 v{VDV}, {WS_V - WS_K}, v{VDV}
    s_lshl_b32 s{S_T+2}, s{S_P2}, 16
    s_lshl_b32 s{S_T+3}, s{S_P3}, 13
    s_add_u32 s{S_T+3}, s{S_T+3}, s{S_T+2}
    """)
    srd(a, R_A, S_WS, S_WS + 1, WS_END)
    a("s_barrier")
    a(f"s_setprio {os.environ.get('PAT', '0')}")
    stamp(a, 4)
    a(f"buffer_load_dwordx4 v[{Q}:{Q+3}], v{VROW}, s[{R_WS}:{R_WS+3}], s{S_T+3} offen")
    def dma_chunk():
        return [f"s_add_u32 m0, s{S_M0}, {LDS_K}",
                f"buffer_load_dwordx4 v{VDK}, s[{R_A}:{R_A+3}], s{S_KA} offen lds",
                f"s_add_u32 m0, s{S_M0}, {LDS_V}",
                f"buffer_load_dwordx4 v{VDV}, s[{R_A}:{R_A+3}], s{S_KA} offen lds",
                f"s_add_u32 s{S_KA}, s{S_KA}, 8192",
                f"s_add_u32 s{S_M0}, s{S_M0}, 8192",
                f"s_and_b32 s{S_M0}, s{S_M0}, 0x7fff"]
    a("AT_RESTART:")
    a(f"""
    s_lshl_b32 s{S_M0}, s{S_WAVE}, 10
    s_add_u32 s{S_KA}, s{S_T+2}, s{S_M0}
    s_add_u32 s{S_KA}, s{S_KA}, {WS_K}
    s_mov_b32 s{R_A+2}, {WS_END}
    """)
    for c in range(3):
        for ins in dma_chunk():
            a(ins)
    a(f"""
    v_and_b32 v{T}, 19, v{L}
    v_bfe_u32 v{T+1}, v{L}, 2, 1
    v_lshl_add_u32 v{T}, v{T+1}, 3, v{T}
    v_bfe_u32 v{T+2}, v{L}, 3, 1
    v_lshl_add_u32 v{T}, v{T+2}, 2, v{T}
    v_lshlrev_b32 v{T}, 5, v{T}
    v_lshrrev_b32 v{T+2}, 5, v{L}
    v_xor_b32 v{T+1}, v{T+1}, v{T+2}
    v_lshl_add_u32 v{VKA}, v{T+1}, 4, v{T}
    v_bfe_u32 v{T}, v{L}, 2, 2
    v_lshl_add_u32 v{T}, v{T+2}, 3, v{T}
    v_lshlrev_b32 v{T}, 5, v{T}
    v_and_b32 v{T+1}, 1, v{L}
    v_lshl_add_u32 v{T}, v{T+1}, 4, v{T}
    v_bfe_u32 v{T+1}, v{L}, 1, 1
    v_lshl_add_u32 v{T}, v{T+1}, 3, v{T}
    v_bfe_u32 v{T+1}, v{L}, 4, 1
    v_cmp_eq_u32 vcc, 1, v{T+1}
    v_add_u32 v{T+1}, {LDS_ONES + 128}, v{T}
    v_cndmask_b32 v{VVA}, v{T}, v{T+1}, vcc
    v_mov_b32 v{T+1}, 8192
    v_cndmask_b32 v{VINC}, v{T+1}, 0, vcc
    """)
    for r in list(range(O, O + 16)) + list(range(P, P + 8)) + list(range(VF + 8, VF + 16)):
        a(f"v_mov_b32 v{r}, 0")
    a("s_waitcnt vmcnt(4)")
    a("s_barrier")
    stamp(a, 5)
    def kread(p, kt):
        return f"ds_read_b128 v[{KF+4*p}:{KF+4*p+3}], v{VKA} offset:{LDS_K+1024*kt}"
    def vreads(p, kt):
        return [f"ds_read_b64_tr_b16 v[{VF+8*p+4*u+2*t}:{VF+8*p+4*u+2*t+1}], v{VVA} offset:{1024*kt+512*u+128*t}" for u in range(2) for t in range(2)]
    def qk(sp, p, useC=True):
        c = f"v[{C}:{C+15}]" if useC else "0"
        S = S_ + 16 * sp
        return f"v_mfma_f32_32x32x16_bf16 v[{S}:{S+15}], v[{KF+4*p}:{KF+4*p+3}], v[{Q}:{Q+3}], {c}"
    def pv(p, u):
        return f"v_mfma_f32_32x32x16_bf16 v[{O}:{O+15}], v[{VF+8*p+4*u}:{VF+8*p+4*u+3}], v[{P+4*u}:{P+4*u+3}], v[{O}:{O+15}]"
    a(kread(0, 0))
    a(kread(1, 1))
    a(f"s_cmp_eq_u32 s{S_MODE}, 1")
    a("s_waitcnt lgkmcnt(0)")
    a("s_cbranch_scc1 AT_HAVE_M")
    a(qk(0, 0, False))
    a(qk(1, 1, False))
    a(f"v_max3_f32 v{T}, v{S_}, v{S_+1}, v{S_+2}")
    for i in range(3, 31, 2):
        a(f"v_max3_f32 v{T}, v{T}, v{S_+i}, v{S_+i+1}")
    a(f"v_max_f32 v{T}, v{T}, v{S_+31}")
    a(f"s_mov_b32 s{S_T}, {f32(-TOFF)}")
    a("AT_FINM:")
    a(f"v_mov_b32 v{T+2}, v{T}")
    a(f"v_permlane32_swap_b32 v{T}, v{T+2}")
    a(f"v_max_f32 v{T}, v{T}, v{T+2}")
    a(f"v_sub_f32 v{C}, s{S_T}, v{T}")
    for i in range(1, 16):
        a(f"v_mov_b32 v{C+i}, v{C}")
    a(f"""
    s_cmp_eq_u32 s{S_MODE}, 0
    s_cbranch_scc1 AT_HAVE_M
    s_barrier
    s_branch AT_RESTART
    AT_HAVE_M:
    """)
    a(qk(0, 0))
    a(f"s_mov_b32 s{S_C}, 0")
    if "AT" in os.environ.get("PROF", ""):
        a("s_memtime s[0:1]\ns_waitcnt lgkmcnt(0)\ns_mov_b32 s11, s0")
    a("AT_LOOP:")
    for kt in range(8):
        p = kt & 1
        S = S_ + 16 * p
        extra = []
        if kt == 0:
            if os.environ.get('PX'):
                px, pp = os.environ['PX'].split(',')
                a(f"s_cmp_lg_u32 s{S_C}, {px}\ns_cbranch_scc1 AT_NOPX\ns_setprio {pp}\nAT_NOPX:")
            a("s_waitcnt vmcnt(2) lgkmcnt(0)")
            a("s_barrier")
        else:
            a("s_waitcnt lgkmcnt(0)")
        a(qk(1 - p, 1 - p))
        extra += vreads(p, kt)
        if kt == 6:
            extra += [f"v_add_u32 v{VKA}, 8192, v{VKA}", f"v_and_b32 v{VKA}, 0x7fff, v{VKA}"]
        extra += [kread(p, (kt + 2) % 8)]
        if kt == 7:
            extra += [f"v_add_u32 v{VVA}, v{VINC}, v{VVA}", f"v_and_b32 v{VVA}, 0x17fff, v{VVA}",
                      f"s_add_u32 s{S_C}, s{S_C}, 1", f"s_cmp_lt_u32 s{S_C}, 8"]
        if kt == 0:
            extra += [f"s_cmp_lt_u32 s{S_C}, 5", f"s_cselect_b32 s{R_A+2}, {WS_END}, 0"] + dma_chunk()
        ex = [f"v_exp_f32 v{S+i}, v{S+i}" for i in range(16)]
        cv = [f"v_cvt_pk_bf16_f32 v{P+i}, v{S+2*i}, v{S+2*i+1}" for i in range(8)]
        seq = ex[:4] + [pv(1 - p, 0)] + ex[4:8] + [pv(1 - p, 1)] + ex[8:] + cv
        for ins in seq:
            a(ins)
            if extra and ins.startswith("v_exp"):
                a(extra.pop(0))
        for e in extra:
            a(e)
    a("s_cbranch_scc1 AT_LOOP")
    a("s_waitcnt lgkmcnt(0)")
    a(pv(1, 0))
    a(pv(1, 1))
    if "AT" in os.environ.get("PROF", ""):
        a("s_memtime s[0:1]\ns_waitcnt lgkmcnt(0)\ns_sub_u32 s64, s0, s11")
    stamp(a, 6)
    def ostore():
        a(f"""
        v_rcp_f32 v{T+4}, v{O+8}
        s_add_u32 s{S_T+7}, s{S_T+3}, {WS_O}
        """)
        for i in range(4):
            a(f"v_mul_f32 v{S_+2*i}, v{O+2*i}, v{T+4}")
            a(f"v_mul_f32 v{S_+2*i+1}, v{O+2*i+1}, v{T+4}")
            a(f"v_cvt_pk_bf16_f32 v{P+i}, v{S_+2*i}, v{S_+2*i+1}")
        a(f"buffer_store_dwordx4 v[{P}:{P+3}], v{VROW}, s[{R_WS}:{R_WS+3}], s{S_T+7} offen sc1")
    if OPT:
        ostore()
    a(f"""
    s_cmp_eq_u32 s{S_MODE}, 1
    s_cbranch_scc1 AT_FIN
    s_mov_b32 s{S_T+6}, {f32(LLIM)}
    v_cmp_nlt_f32 vcc, v{O+8}, s{S_T+6}
    v_add_f32 v{T+2}, abs(v{O}), abs(v{O+1})
    """)
    for i in range(2, 8):
        a(f"v_add_f32 v{T+2}, v{T+2}, abs(v{O+i})")
    a(f"""
    s_mov_b32 s{S_T+6}, 0x203
    v_cmp_class_f32 s[{S_T+4}:{S_T+5}], v{T+2}, s{S_T+6}
    s_or_b64 vcc, vcc, s[{S_T+4}:{S_T+5}]
    s_cmp_lg_u64 vcc, 0
    s_cselect_b32 s{S_T}, 1, 0
    v_mov_b32 v{T}, s{S_T}
    s_lshl_b32 s{S_T+1}, s{S_WAVE}, 2
    s_add_u32 s{S_T+1}, s{S_T+1}, {LDS_VOTE}
    v_mov_b32 v{T+1}, s{S_T+1}
    ds_write_b32 v{T+1}, v{T}
    v_and_b32 v{T+1}, 7, v{L}
    v_lshlrev_b32 v{T+1}, 2, v{T+1}
    v_add_u32 v{T+1}, {LDS_VOTE}, v{T+1}
    s_waitcnt vmcnt(0) lgkmcnt(0)
    s_barrier
    ds_read_b32 v{T}, v{T+1}
    s_waitcnt lgkmcnt(0)
    v_cmp_ne_u32 vcc, 0, v{T}
    s_nop 4
    s_cbranch_vccz {"AT_SIG" if OPT else "AT_FIN"}
    s_mov_b32 s{S_MODE}, 1
    v_and_b32 v{T+4}, 31, v{L}
    v_lshlrev_b32 v{T+4}, 5, v{T+4}
    v_lshrrev_b32 v{T+5}, 5, v{L}
    v_lshl_add_u32 v{T+4}, v{T+5}, 4, v{T+4}
    s_add_u32 s{S_T}, s{S_T+2}, {WS_K}
    s_mov_b32 s{S_T+1}, 0
    v_mov_b32 v{T}, 0xff800000
    AT_MAXLOOP:
    buffer_load_dwordx4 v[{KF}:{KF+3}], v{T+4}, s[{R_WS}:{R_WS+3}], s{S_T} offen
    s_waitcnt vmcnt(0)
    """)
    a(qk(0, 0, False))
    for i in range(0, 16, 2):
        a(f"v_max3_f32 v{T}, v{T}, v{S_+i}, v{S_+i+1}")
    a(f"""
    s_add_u32 s{S_T}, s{S_T}, 1024
    s_add_u32 s{S_T+1}, s{S_T+1}, 1
    s_cmp_lt_u32 s{S_T+1}, 64
    s_cbranch_scc1 AT_MAXLOOP
    s_mov_b32 s{S_T}, 0
    s_branch AT_FINM
    AT_FIN:
    """)
    if not OPT:
        ostore()
    a(f"""
    s_waitcnt vmcnt(0)
    s_barrier
    AT_SIG:
    s_lshl_b32 s{S_T}, s{S_P3}, 1
    s_lshr_b32 s{S_T+1}, s{S_P2}, 4
    s_add_u32 s{S_T}, s{S_T}, s{S_T+1}
    s_add_u32 s{S_T}, s{S_T}, {C_S5}
    s_cmp_eq_u32 s{S_WAVE}, 0
    s_cbranch_scc0 AT_END
    """)
    signal(a, S_T, T)
    a("AT_END:")
    if STAMP:
        a(f"s_mov_b32 s{70+2*12}, s{S_MODE}")
    stamp_flush(a, R_WS, S_WAVE, vbase=16)
    a("s_endpgm")
```

```python
from mega import *

SSM = os.environ.get('SS', '1') == '1'
WIN = int(os.environ.get('WIN', '8'))
PF2 = int(os.environ.get('PF2', '1'))
PFW = int(os.environ.get('PFW', '0'))
OAP = int(os.environ.get('OAP', '0'))
PFI = int(os.environ.get('PFI', '0'))
PFD = int(os.environ.get('PFD', '1'))
HPB = int(os.environ.get('HPB', '3'))
NAZ = int(os.environ.get('NAZ', '2'))
PLB = int(os.environ.get('PLB', '0'))
BST = int(os.environ.get('BST', '1'))
NRH = int(os.environ.get('NRH', '8'))
def hrot(a, d):
    a(f"""
    s_and_b32 s{d}, s{S_P2}, 3
    s_lshl_b32 s{d}, s{d}, 1
    s_add_u32 s{d}, s{d}, s{S_P3}
    s_lshl_b32 s{d}, s{d}, 1
    s_sub_u32 s{d+1}, s{d}, 14
    s_cmp_ge_u32 s{d}, 14
    s_cselect_b32 s{d}, s{d+1}, s{d}
    s_mul_i32 s{d}, s{d}, {ROT}
    """)
def preload(a, gh, gf):
    t = S_T
    a(f"""
    v_lshlrev_b32 v17, 4, v{V_CHB}
    v_lshl_add_u32 v17, v{V_ROW}, 10, v17
    s_lshl_b32 s{t}, s{S_LW}, 13
    v_add_u32 v17, s{t}, v17
    s_lshl_b32 s{t}, s{S_LW}, 10
    v_lshlrev_b32 v18, 4, v{L}
    v_add_u32 v18, s{t}, v18
    v_add_u32 v19, {gf.lds_b}, v18
    v_add_u32 v18, {gh.lds_b}, v18
    s_lshl_b32 s{t+4}, s{S_P3}, 7
    """)
    hrot(a, t)
    srd(a, R_B, S_WOUT, S_WOUT + 1, 896 * 1024)
    a(f"s_lshl1_add_u32 s{t}, s{t}, {min(gh.breg)}")
    for d in sorted(gh.breg):
        a(f"""
        s_sub_u32 s{t+1}, s{t}, 28
        s_cmp_ge_u32 s{t}, 28
        s_cselect_b32 s{t}, s{t+1}, s{t}
        s_lshl_b32 s{t+2}, s{t}, 15
        s_add_u32 s{t+2}, s{t+2}, s{t+4}
        buffer_load_dwordx4 v[{gh.breg[d]}:{gh.breg[d]+3}], v17, s[{R_B}:{R_B+3}], s{t+2} offen
        s_add_u32 s{t}, s{t}, {BST}
        """)
    srd(a, R_B, S_WO, S_WO + 1, 512 * 1024)
    a(f"""
    s_lshl_b32 s{t}, s{S_P2}, 1
    s_add_u32 s{t}, s{t}, s{S_P3}
    s_and_b32 s{t}, s{t}, {7*ROT}
    s_lshl_b32 s{t}, s{t}, 1
    """)
    for d in sorted(gf.breg):
        a(f"""
        s_and_b32 s{t}, s{t}, 15
        s_lshl_b32 s{t+2}, s{t}, 15
        s_add_u32 s{t+2}, s{t+2}, s{t+4}
        buffer_load_dwordx4 v[{gf.breg[d]}:{gf.breg[d]+3}], v17, s[{R_B}:{R_B+3}], s{t+2} offen
        s_add_u32 s{t}, s{t}, 1
        """)
def gZ(a):
    return G2(a, "B1", BM=128, NT=4, mt=2, nt=2, NA=NAZ, NBB=4, ND=16, lds_a=0, lds_b=NAZ*16384, acc=16, fr=80, va=4, vb=8, G=1,
              st=dict(vb1=10, rows=[124, 126], cols=112, sel=120, tmp=(0, 15)), jmaj=True, **GK)
def gS(a):
    return G2(a, "B2", BM=64, NT=4, mt=1, nt=2, NA=3, NBB=6, ND=64, lds_a=0, lds_b=24576, acc=16, fr=48, va=4, vb=8, bblk=True, SS=SSM, **GK)
def gH(a):
    nah = int(os.environ.get('NAH', '4'))
    nbh = int(os.environ.get('NBH', '8'))
    g = G2(a, "B3", BM=64, NT=2, mt=1, nt=1, NA=nah, NBB=nbh, ND=28, lds_a=0, lds_b=nah*8192, acc=16, fr=48, va=4, vb=8, ablk=True, SS=SSM, **GK)
    if os.environ.get('UNR') or PLB:
        g.period = 99
    if PLB:
        g.breg, g.vlds = {nbh + i*BST: 20 + 4*i for i in range(NRH)}, 18
    return g
def gF(a):
    if PLB:
        g = G2(a, "B4", BM=64, NT=2, mt=1, nt=1, NA=8, NBB=4, ND=16, lds_a=0, lds_b=65536, acc=16, fr=48, va=4, vb=8, ablk=True, SS=SSM, **GK)
        g.breg, g.vlds = {i: 64 + 4*i for i in range(16)}, 19
        return g
    return G2(a, "B4", BM=64, NT=2, mt=1, nt=1, NA=6, NBB=8, ND=16, lds_a=0, lds_b=49152, acc=16, fr=48, va=4, vb=8, ablk=True, SS=SSM, **GK)

FUSE = int(os.environ.get('FUSE', '0'))
CHK = [int(c) for c in os.environ.get('CHK', '9,10,11,12').split(',') if c]
class GHF(G2):
    def mfmas(self, d, ksl):
        fa, fb = self._regs(d, ksl)
        dd = self.acc + (16 if d >= 28 else 0)
        return [f"v_mfma_f32_32x32x16_bf16 v[{dd}:{dd+15}], v[{fb}:{fb+3}], v[{fa}:{fa+3}], v[{dd}:{dd+15}]"]
def gHF(a, nd):
    g = GHF(a, "B3", BM=64, NT=2, mt=1, nt=1, NA=5, NBB=10, ND=nd, lds_a=0, lds_b=40960, acc=16, fr=48, va=4, vb=8, ablk=True, SS=True, **GK)
    g.period = 99
    return g

def l_fused(a, g, order):
    NS, NA, NBB, U0, B0 = 22, g.NA, g.NBB, 14, 28
    VP = 64
    def add(seq, k, i):
        seq.extend([(k, i)] * (g.qa if k == "a" else g.qb if k == "b" else 1))
    def cnt(seq, need):
        idx = max([p for p, t in enumerate(seq) if t in need] + [-1])
        return min(len(seq) - 1 - idx, 63)
    def iss_a(seq, u):
        if u == U0:
            a(f"""
            s_mov_b32 s{S_KA0}, s{S_T+2}
            s_add_u32 s{S_KA1}, s{S_T+2}, {8*g.ka_step}
            s_mov_b32 s{g.s_ka}, s{S_T+3}
            """)
        g.issue_a(u); add(seq, "a", u)
    def iss_b(seq, d):
        if d == B0:
            a(f"""
            s_add_u32 s{S_KB1}, s{S_KB0}, {16*g.kb_step}
            s_mov_b32 s{g.s_kb}, s{S_T+4}
            """)
        g.srdB = R_A if d >= B0 else R_B
        g.issue_b(d); add(seq, "b", d)
    todo = []
    def bplan(seq, d):
        for b in (2 * d + NBB, 2 * d + 1 + NBB):
            if b < 2 * NS:
                iss_b(seq, b)
    def run(d0, seq, ready):
        for d in range(d0, NS):
            if not ready and d == U0 - 1:
                poll(a, "BL_S5", R_WS, 61, f"s{S_T+5}", 16, 60)
                stamp(a, 11)
                del seq[:]
                for u in range(U0, d + NA):
                    iss_a(seq, u)
                ready = True
            need = [("a", d + 1), ("b", 2 * d + 2), ("b", 2 * d + 3)]
            if not ready and d in CHK:
                need.append(("p", d))
            if d + 1 < NS:
                a(f"s_waitcnt vmcnt({cnt(seq, need)})")
            a("s_barrier")
            if not ready and d in CHK:
                a(f"""
                v_cmp_ne_u32 vcc, 16, v{VP+d}
                s_nop 4
                s_cbranch_vccz BLF_V{d}
                """)
                todo.append((d, list(seq)))
            if not ready and d + NA - 1 in CHK:
                a(f"buffer_load_dword v{VP+d+NA-1}, v61, s[{R_WS}:{R_WS+3}], s{S_T+5} offen sc1")
                add(seq, "p", d + NA - 1)
            if d + NA < NS and (ready or d + NA < U0):
                iss_a(seq, d + NA)
            bplan(seq, d)
        a("s_branch BLF_END")
    seq = []
    for k, i in order:
        add(seq, k, i)
    a(f"s_waitcnt vmcnt({cnt(seq, [('a', 0), ('b', 0), ('b', 1)])})")
    a("s_barrier")
    run(0, seq, False)
    for d, seq in todo:
        a(f"BLF_V{d}:")
        stamp(a, 11)
        for u in range(U0, d + NA + 1):
            iss_a(seq, u)
        bplan(seq, d)
        run(d + 1, seq, True)
    a("BLF_END:")

def b_params(a):
    a(f"""
    s_bfe_u32 s{S_P0}, s{S_IDX}, 0x20001
    s_lshl_b32 s{S_P0}, s{S_P0}, 2
    s_bfe_u32 s{S_T}, s{S_IDX}, 0x20003
    s_add_u32 s{S_P0}, s{S_P0}, s{S_T}
    s_and_b32 s{S_P1}, s{S_IDX}, 1
    s_mul_i32 s{S_P1}, s{S_P1}, 7
    s_lshr_b32 s{S_P3}, s{S_IDX}, 5
    s_add_u32 s{S_P1}, s{S_P1}, s{S_P3}
    s_and_b32 s{S_P2}, s{S_IDX}, 7
    s_lshl_b32 s{S_P2}, s{S_P2}, 2
    s_add_u32 s{S_P2}, s{S_P2}, s{S_T}
    """)

def b_loader(a):
    g, gs, gh, gf = gZ(a), gS(a), gH(a), gF(a)
    if FUSE:
        gh = gHF(a, 28)
    VP16, VL16 = 5, 16
    a("s_setprio 3")
    loader_lane_setup(a, 60)
    a(f"""
    v_and_b32 v{VP16}, 1, v{L}
    v_lshlrev_b32 v{VP16}, 8, v{VP16}
    v_lshlrev_b32 v{VL16}, 4, v{L}
    v_mov_b32 v{VZ0}, 0
    v_mov_b32 v{VZF}, 0
    s_cmp_lt_u32 s{S_IDX}, 224
    s_cbranch_scc1 BL_Z
    s_waitcnt lgkmcnt(0)
    """)
    srd(a, R_WS, S_WS, S_WS + 1, WS_END)
    srd(a, R_M, S_DBG, S_DBG + 1, 256)
    if PLB:
        preload(a, gh, gf)
    a("s_branch BL_H")
    a("BL_Z:")
    g.l_setup_a(8, 1024, 60)
    g.l_setup_b(12, 3584, 60, pstride=1792)
    g.l_bind(R_A, R_B, S_KA, S_KB)
    a(f"""
    s_lshl_b32 s{S_KA}, s{S_P0}, 17
    s_lshl_b32 s{S_KB}, s{S_P1}, 7
    s_lshl1_add_u32 s{S_T}, s{S_P0}, s{S_P3}
    s_and_b32 s{S_T}, s{S_T}, {7*ROT}
    """)
    g.l_rot(S_T)
    a("s_waitcnt lgkmcnt(0)")
    srd(a, R_A, S_X, S_X + 1, 2048 * 1024)
    srd(a, R_B, S_WIN, S_WIN + 1, 512 * 3584)
    order = g.pro_order()
    g.l_issue(order[:HPB])
    srd(a, R_WS, S_WS, S_WS + 1, WS_END)
    stamp(a, 1)
    g.l_run(order[:HPB], late=order[HPB:])
    z0_issue(a)
    gs.l_setup_a(8, 4096, 60)
    gs.l_setup_b(12, None, 60)
    gs.l_bind(R_A, R_WS, S_KA, S_KB)
    srd(a, R_A, S_WSP, S_WSP + 1, 2048 * 4096)
    a(f"""
    s_lshl_b32 s{S_KA}, s{S_P2}, 18
    s_lshl_b32 s{S_KB}, s{S_P3}, 19
    s_add_u32 s{S_KB}, s{S_KB}, {WS_Z2N}
    s_mul_i32 s{S_T}, s{S_P3}, {max(1, WIN//8) if WIN else 5}
    s_mul_i32 s{S_T+1}, s{S_P2}, {WIN//4 if WIN else 8}
    s_add_u32 s{S_T}, s{S_T}, s{S_T+1}
    s_and_b32 s{S_T}, s{S_T}, {((WIN-1) if WIN else 31)*ROT}
    """)
    gs.l_rot(S_T, WIN)
    a(f"""
    s_cmp_eq_u32 s{S_LW}, 0
    s_cbranch_scc1 BL_MLN
    """)
    oa, ob = gs.pro_order("a"), gs.pro_order("b")
    def pfw():
        a(f"""
        v_lshlrev_b32 v60, 12, v{L}
        s_mul_i32 s{S_T}, s{S_P3}, 5
        s_lshl_b32 s{S_T+1}, s{S_LW}, 1
        s_add_u32 s{S_T}, s{S_T}, s{S_T+1}
        s_add_u32 s{S_T}, s{S_T}, 30
        s_and_b32 s{S_T+1}, s{S_T}, 31
        s_lshl_b32 s{S_T+1}, s{S_T+1}, 7
        s_add_u32 s{S_T+1}, s{S_T+1}, s{S_KA0}
        s_add_u32 s{S_T}, s{S_T}, 1
        s_and_b32 s{S_T}, s{S_T}, 31
        s_lshl_b32 s{S_T}, s{S_T}, 7
        s_add_u32 s{S_T}, s{S_T}, s{S_KA0}
        buffer_load_dword v61, v60, s[{R_A}:{R_A+3}], s{S_T+1} offen
        buffer_load_dword v61, v60, s[{R_A}:{R_A+3}], s{S_T} offen
        """)
    for b in range(5):
        if OAP == b:
            gs.l_issue(oa)
        if PFW == b + 1:
            pfw()
        if PLB and PLB == b:
            preload(a, gh, gf)
        if b < 4:
            a("s_barrier")
    a(f"""
    s_branch BL_G3
    BL_MLN:
    s_barrier
    v_add_u32 v60, {LDS_LNS}, v{VL16}
    s_mul_i32 s{S_T}, s{S_P0}, 14336
    s_add_u32 s{S_T}, s{S_T}, {WS_LNP}
    s_lshl_b32 s{S_T+1}, s{S_P1}, 10
    s_add_u32 s{S_T+1}, s{S_T+1}, s{S_T}
    s_add_u32 s{S_T+2}, s{S_P0}, {C_S2}
    s_lshl_b32 s{S_T+3}, s{S_T+2}, 8
    s_add_u32 s{S_T+3}, s{S_T+3}, {WS_CNT}
    s_add_u32 s{S_T+4}, s{S_T}, 4096
    s_add_u32 s{S_T+5}, s{S_T}, 8192
    s_add_u32 s{S_T+6}, s{S_T}, 12288
    v_mov_b32 v62, 1
    s_waitcnt vmcnt(0)
    """)
    stamp(a, 2)
    z0_check(a, "BLA")
    a(f"""
    s_mov_b64 exec, 1
    buffer_atomic_add v62, v{VZ0}, s[{R_WS}:{R_WS+3}], s{S_T+3} offen sc0 sc1
    s_mov_b64 exec, -1
    s_barrier
    ds_read_b128 v[64:67], v60
    ds_read_b128 v[68:71], v60 offset:1024
    ds_read_b128 v[72:75], v60 offset:2048
    ds_read_b128 v[76:79], v60 offset:3072
    s_waitcnt vmcnt(0) lgkmcnt(0)
    v_pk_add_f32 v[64:65], v[64:65], v[68:69]
    v_pk_add_f32 v[66:67], v[66:67], v[70:71]
    v_pk_add_f32 v[72:73], v[72:73], v[76:77]
    v_pk_add_f32 v[74:75], v[74:75], v[78:79]
    v_pk_add_f32 v[64:65], v[64:65], v[72:73]
    v_pk_add_f32 v[66:67], v[66:67], v[74:75]
    v_or_b32 v64, 1, v64
    v_or_b32 v65, 1, v65
    v_or_b32 v66, 1, v66
    v_or_b32 v67, 1, v67
    buffer_store_dwordx4 v[64:67], v{VL16}, s[{R_WS}:{R_WS+3}], s{S_T+1} offen sc1
    v_readfirstlane_b32 s{S_T+7}, v62
    s_cmp_eq_u32 s{S_T+7}, 13
    s_cbranch_scc1 BL_S2_X
    """)
    poll(a, "BL_S2", R_WS, VZ0, f"s{S_T+3}", 14, 61, inv=False)
    stamp(a, 3)
    D = 64
    a(f"s_mov_b32 s{S_T+8}, 0")
    a("BL_LNP:")
    for e in range(14):
        a(f"buffer_load_dwordx4 v[{D+4*e}:{D+4*e+3}], v{VL16}, s[{R_WS}:{R_WS+3}], s{[S_T, S_T+4, S_T+5, S_T+6][e >> 2]} offen offset:{(e & 3)*1024} sc1")
    a("s_waitcnt vmcnt(0)")
    for c in range(2):
        regs = list(range(D + 28 * c, D + 28 * c + 28))
        a(f"v_min_u32 v{61+c}, v{regs[0]}, v{regs[1]}")
    for k in range(2, 28, 2):
        for c in range(2):
            a(f"v_min3_u32 v{61+c}, v{61+c}, v{D+28*c+k}, v{D+28*c+k+1}")
    a(f"""
    v_min_u32 v61, v61, v62
    v_cmp_eq_u32 vcc, 0, v61
    s_add_u32 s{S_T+8}, s{S_T+8}, 1
    s_cmp_gt_u32 s{S_T+8}, {POLL_MAX}
    s_cbranch_scc1 BL_LNX
    s_cbranch_vccz BL_LNX
    s_sleep 2
    s_branch BL_LNP
    BL_LNX:
    """)
    n = 14
    idx = list(range(14))
    while len(idx) > 1:
        nxt = []
        for k in range(0, len(idx) - 1, 2):
            for q in range(4):
                a(f"v_add_f32 v{D+4*idx[k]+q}, v{D+4*idx[k]+q}, v{D+4*idx[k+1]+q}")
            nxt.append(idx[k])
        if len(idx) & 1:
            nxt.append(idx[-1])
        idx = nxt
    ls = []
    for i in range(2):
        M, R = D + 2 * i, D + 2 * i + 1
        ls.append([f"v_mul_f32 v{M}, {f32(1.0/896)}, v{M}",
                   f"v_mul_f32 v{R}, {f32(1.0/896)}, v{R}",
                   f"v_fma_f32 v{R}, -v{M}, v{M}, v{R}",
                   f"v_max_f32 v{R}, 0, v{R}"] + bf16r_l(R, R) + [f"v_add_f32 v{R}, {f32(1e-5)}, v{R}"] + bf16r_l(R, R) +
                  [f"v_sqrt_f32 v{R}, v{R}"] + bf16r_l(R, R) + [f"v_rcp_f32 v{R}, v{R}"] + bf16r_l(M, M))
    interleave(a, ls)
    a(f"""
    ds_write_b128 v60, v[{D}:{D+3}] offset:{LDS_LNQ - LDS_LNS}
    s_waitcnt lgkmcnt(0)
    s_barrier
    """)
    stamp(a, 4)
    gs.l_issue(oa)
    if PLB and PLB < 5:
        preload(a, gh, gf)
    a(f"""
    s_add_u32 s{S_T}, s{S_P1}, {C_S3}
    s_lshl_b32 s{S_T+1}, s{S_P3}, 9
    s_add_u32 s{S_T+1}, s{S_T+1}, {WS_CNT + C_S3*256}
    s_barrier
    """)
    stamp(a, 5)
    signal(a, S_T, 60)
    poll(a, "BL_S3", R_WS, VP16, f"s{S_T+1}", 16, 60)
    a("BL_G3:")
    a("s_barrier")
    stamp(a, 6)
    gs.l_issue(ob)
    gs.l_run(oa + ob, extra=(PLB + 24, lambda: preload(a, gh, gf), 16 + NRH) if PLB >= 5 else None)
    stamp(a, 7)
    a("BL_H:")
    gh.l_setup_a(8, None, 60)
    gh.l_setup_b(12, 1024, 60)
    gh.l_bind(R_WS, R_B, S_KA, S_KB)
    srd(a, R_B, S_WOUT, S_WOUT + 1, 896 * 1024)
    a(f"""
    s_lshl_b32 s{S_KA}, s{S_P2}, 11
    s_add_u32 s{S_KA}, s{S_KA}, {WS_H}
    s_lshl_b32 s{S_KB}, s{S_P3}, 7
    s_and_b32 s{S_T}, s{S_P2}, 3
    s_lshl_b32 s{S_T}, s{S_T}, 1
    s_add_u32 s{S_T}, s{S_T}, s{S_P3}
    s_lshl_b32 s{S_T}, s{S_T}, 1
    s_sub_u32 s{S_T+1}, s{S_T}, 14
    s_cmp_ge_u32 s{S_T}, 14
    s_cselect_b32 s{S_T}, s{S_T+1}, s{S_T}
    s_mul_i32 s{S_T}, s{S_T}, {ROT}
    """)
    gh.l_rot(S_T)
    oa, ob = gh.pro_order("a"), gh.pro_order("b")
    gh.l_issue(ob)
    a(f"""
    s_add_u32 s{S_T}, s{S_P2}, {C_S4}
    s_lshl_b32 s{S_T+1}, s{S_T}, 8
    s_add_u32 s{S_T+1}, s{S_T+1}, {WS_CNT}
    s_cmp_lt_u32 s{S_IDX}, 224
    s_cbranch_scc0 BL_NS4
    s_barrier
    s_cmp_eq_u32 s{S_LW}, 0
    s_cbranch_scc0 BL_G4
    """)
    signal(a, S_T, 60)
    a(f"""
    BL_NS4:
    s_cmp_eq_u32 s{S_LW}, 0
    s_cbranch_scc0 BL_G4
    """)
    stamp(a, 8)
    z0_check(a, "BLC")
    poll(a, "BL_S4", R_WS, VZ0, f"s{S_T+1}", 7, 60)
    a("BL_G4:")
    a("s_barrier")
    stamp(a, 9)
    gh.l_issue(oa)
    if FUSE:
        srd(a, R_A, S_WO, S_WO + 1, 512 * 1024)
        a(f"""
        s_lshl_b32 s{S_T+2}, s{S_P2}, 11
        s_add_u32 s{S_T+2}, s{S_T+2}, {WS_O}
        s_lshl_b32 s{S_T}, s{S_P2}, 1
        s_add_u32 s{S_T}, s{S_T}, s{S_P3}
        s_and_b32 s{S_T}, s{S_T}, {7*ROT}
        s_mul_i32 s{S_T+3}, s{S_T}, {gh.ka_step}
        s_add_u32 s{S_T+3}, s{S_T+3}, s{S_T+2}
        s_mul_i32 s{S_T+4}, s{S_T}, {2*gh.kb_step}
        s_add_u32 s{S_T+4}, s{S_T+4}, s{S_KB0}
        v_and_b32 v61, 1, v{L}
        v_lshlrev_b32 v61, 8, v61
        s_and_b32 s{S_T+5}, s{S_IDX}, 7
        s_lshl_b32 s{S_T+5}, s{S_T+5}, 9
        s_add_u32 s{S_T+5}, s{S_T+5}, {WS_CNT + C_S5*256}
        """)
        l_fused(a, gh, ob + oa)
        stamp_flush(a, R_WS, S_WAVE)
        a("s_endpgm")
        return
    a(f"""
    v_and_b32 v61, 1, v{L}
    v_lshlrev_b32 v61, 8, v61
    s_and_b32 s{S_T+5}, s{S_IDX}, 7
    s_lshl_b32 s{S_T+5}, s{S_T+5}, 9
    s_add_u32 s{S_T+5}, s{S_T+5}, {WS_CNT + C_S5*256}
    v_mov_b32 v56, 0
    """)
    EP = int(os.environ.get('EP', '11'))
    gh.l_run(ob + oa, extra=(EP, lambda: a(f"buffer_load_dword v56, v61, s[{R_WS}:{R_WS+3}], s{S_T+5} offen sc1")) if EP else None)
    for k in ("vda", "vdb", "ka_step", "kb_step", "b_imm"):
        setattr(gf, k, getattr(gh, k))
    gf.l_bind(R_WS, R_B, S_KA, S_KB)
    srd(a, R_B, S_WO, S_WO + 1, 512 * 1024)
    a(f"""
    s_lshl_b32 s{S_KA}, s{S_P2}, 11
    s_add_u32 s{S_KA}, s{S_KA}, {WS_O}
    s_lshl_b32 s{S_KB}, s{S_P3}, 7
    s_lshl_b32 s{S_T}, s{S_P2}, 1
    s_add_u32 s{S_T}, s{S_T}, s{S_P3}
    s_and_b32 s{S_T}, s{S_T}, {7*ROT}
    """)
    gf.l_rot(S_T)
    oa, ob = gf.pro_order("a"), gf.pro_order("b")
    if EP:
        a(f"""
        s_waitcnt vmcnt(0)
        v_cmp_ne_u32 vcc, 16, v56
        s_nop 4
        s_cbranch_vccnz BL_SLOW
        """)
        both = gf.pro_order()
        gf.l_issue(both)
        a("s_barrier")
        stamp(a, 11)
        gf.name = "B4F"
        gf.l_run(both)
        a("s_branch BL_FEND")
        a("BL_SLOW:")
        gf.name = "B4"
    gf.l_issue(ob)
    stamp(a, 10)
    if not EP:
        a(f"""
        s_cmp_eq_u32 s{S_LW}, 0
        s_cbranch_scc0 BL_G5
        """)
    poll(a, "BL_S5", R_WS, 61, f"s{S_T+5}", 16, 60)
    a("BL_G5:")
    if EP:
        gf.l_issue(oa)
    a("s_barrier")
    stamp(a, 11)
    if not EP:
        gf.l_issue(oa)
    gf.l_run(ob + oa)
    a("BL_FEND:")
    stamp_flush(a, R_WS, S_WAVE)
    a("s_endpgm")


VD = 15
OFS = [0, 64] if (PF == 2 or PF2 == 2) else [0]

def pf_wout(a, T):
    a(f"""
    s_bfe_u32 s{S_T}, s{S_IDX}, 0x20003
    s_lshl_b32 s{S_T}, s{S_T}, 2
    s_add_u32 s{S_T}, s{S_T}, s{S_WAVE}
    s_mul_i32 s{S_T+1}, s{S_T}, {56*1024}
    s_lshl_b32 s{S_T}, s{S_T}, 15
    s_lshl_b32 s{S_T+2}, s{S_P3}, 7
    s_add_u32 s{S_T}, s{S_T}, s{S_T+2}
    s_add_u32 s{S_T+1}, s{S_T+1}, s{S_T+2}
    v_min_u32 v{T}, 55, v{L}
    v_lshlrev_b32 v{T}, 10, v{T}
    v_and_b32 v{T+1}, 31, v{L}
    v_lshlrev_b32 v{T+1}, 10, v{T+1}
    v_lshrrev_b32 v{T+2}, 5, v{L}
    v_lshl_add_u32 v{T+1}, v{T+2}, 6, v{T+1}
    """)
    srd(a, R_A, S_WOUT, S_WOUT + 1, 896 * 1024)
    srd(a, R_B, S_WO, S_WO + 1, 512 * 1024)
    for o in OFS:
        a(f"buffer_load_dword v{VD}, v{T}, s[{R_A}:{R_A+3}], s{S_T+1} offen offset:{o}")
    a(f"buffer_load_dword v{VD}, v{T+1}, s[{R_B}:{R_B+3}], s{S_T} offen")

def b_compute(a):
    g, gs, gh, gf = gZ(a), gS(a), gH(a), gF(a)
    if FUSE:
        gh = gHF(a, 44)
        gf.acc = 32
    T = 112
    a(f"s_setprio {os.environ.get('PB1', '1')}")
    compute_lane_setup(a, T)
    VR = 12
    a(f"""
    s_lshr_b32 s{S_T}, s{S_WAVE}, 1
    s_lshl_b32 s{S_T}, s{S_T}, 5
    s_lshl_b32 s{S_T+1}, s{S_P2}, 6
    s_add_u32 s{S_T}, s{S_T}, s{S_T+1}
    v_and_b32 v{T}, 31, v{L}
    v_add_u32 v{VR+1}, s{S_T}, v{T}
    v_lshrrev_b32 v{T+1}, 5, v{L}
    v_lshlrev_b32 v{T+1}, 4, v{T+1}
    v_lshl_add_u32 v{VR}, v{VR+1}, 5, v{T+1}
    v_lshl_add_u32 v{VR+2}, v{VR+1}, 10, v{T+1}
    s_waitcnt lgkmcnt(0)
    """)
    srd(a, R_WS, S_WS, S_WS + 1, WS_END)
    a(f"""
    s_cmp_lt_u32 s{S_IDX}, 224
    s_cbranch_scc1 BC_Z
    """)
    if PF:
        srd(a, R_A, S_WSP, S_WSP + 1, 2048 * 4096)
        a(f"""
        v_lshlrev_b32 v{T}, 12, v{L}
        s_lshl_b32 s{S_T}, s{S_P2}, 18
        s_lshl_b32 s{S_T+1}, s{S_WAVE}, 7
        s_add_u32 s{S_T}, s{S_T}, s{S_T+1}
        buffer_load_dword v{VD}, v{T}, s[{R_A}:{R_A+3}], s{S_T} offen
        s_waitcnt vmcnt(0)
        """)
        for i in range(8):
            for o in OFS:
                if i or o:
                    a(f"buffer_load_dword v{VD}, v{T}, s[{R_A}:{R_A+3}], s{S_T} offen offset:{i*512+o}")
        a("s_waitcnt vmcnt(0)")
    if PFI:
        srd(a, R_A, S_WSP, S_WSP + 1, 2048 * 4096)
        a(f"""
        v_lshlrev_b32 v{T}, 7, v{L}
        s_lshl_b32 s{S_T}, s{S_P2}, 18
        s_lshl_b32 s{S_T+1}, s{S_WAVE}, 16
        s_add_u32 s{S_T}, s{S_T}, s{S_T+1}
        """)
        for i in range(PFD):
            a(f"buffer_load_dword v{VD}, v{T}, s[{R_A}:{R_A+3}], s{S_T} offen sc1")
            a("s_waitcnt vmcnt(0)")
        for i in range(8):
            a(f"buffer_load_dword v{VD}, v{T}, s[{R_A}:{R_A+3}], s{S_T} offen")
            a(f"s_add_u32 s{S_T}, s{S_T}, 8192")
            a(f"s_waitcnt vmcnt({PFI-1})")
        a("s_waitcnt vmcnt(0)")
        stamp(a, 1)
    a("s_branch BC_H")
    a("BC_Z:")
    if PF:
        srd(a, R_A, S_WIN, S_WIN + 1, 512 * 3584)
        a(f"""
        v_lshrrev_b32 v{T}, 1, v{L}
        v_mul_u32_u24 v{T}, 3584, v{T}
        v_and_b32 v{T+1}, 1, v{L}
        v_lshl_add_u32 v{T}, v{T+1}, 7, v{T}
        s_bfe_u32 s{S_T}, s{S_IDX}, 0x20003
        s_lshl_b32 s{S_T}, s{S_T}, 2
        s_add_u32 s{S_T}, s{S_T}, s{S_WAVE}
        s_mul_i32 s{S_T}, s{S_T}, {32*3584}
        s_lshl_b32 s{S_T+1}, s{S_P1}, 8
        s_add_u32 s{S_T}, s{S_T}, s{S_T+1}
        """)
        for o in OFS:
            a(f"buffer_load_dword v{VD}, v{T}, s[{R_A}:{R_A+3}], s{S_T} offen offset:{o}")
    g.zero_acc()
    a(f"""
    s_mul_i32 s{S_T}, s{S_P0}, 14336
    s_lshl_b32 s{S_T+1}, s{S_P1}, 10
    s_add_u32 s{S_T}, s{S_T}, s{S_T+1}
    s_add_u32 s{S_T}, s{S_T}, {WS_LNP}
    v_lshlrev_b32 v{T}, 2, v0
    buffer_store_dword v16, v{T}, s[{R_WS}:{R_WS+3}], s{S_T} offen sc1
    """)
    g.c_setup()
    stamp(a, 1)
    g.c_run(per=7)
    stamp(a, 2)
    a("s_waitcnt vmcnt(0)")
    RD = 4
    rank1(a, g, LDS_STB, RD, 120, 96, 112, 114)
    stamp(a, 3)
    K0 = -2.0 * 0.7978845608028654 * 1.4426950408889634
    K1c = K0 * 0.044715
    PK, t = 80, 112
    U = 116
    a(f"""
    s_mov_b32 s{S_T+2}, {f32(K1c)}
    s_mov_b32 s{S_T+3}, {f32(K1c)}
    v_mov_b32 v{U+4}, {f32(K0)}
    v_mov_b32 v{U+5}, {f32(K0)}
    s_lshr_b32 s{S_T}, s{S_WAVE}, 1
    s_lshl_b32 s{S_T}, s{S_T}, 6
    v_and_b32 v{U+6}, 31, v{L}
    v_add_u32 v{U+6}, s{S_T}, v{U+6}
    s_lshl_b32 s{S_T+1}, s{S_P0}, 7
    v_add_u32 v{U+7}, s{S_T+1}, v{U+6}
    v_lshrrev_b32 v{U+8}, 5, v{L}
    v_lshlrev_b32 v{U+7}, 5, v{U+7}
    v_lshl_add_u32 v{U+7}, v{U+8}, 4, v{U+7}
    """)
    def gelu(j):
        for i in range(2):
            d = g.acc + (j * 2 + i) * 16
            for hf in range(2):
                o = PK + (j * 2 + i) * 8 + hf * 4
                rs = [d + hf * 8 + 2 * p for p in range(4)]
                for p, r in enumerate(rs):
                    a(f"v_mul_f32 v{r}, v{r}, v{RD+i}")
                    a(f"v_mul_f32 v{r+1}, v{r+1}, v{RD+i}")
                for p, r in enumerate(rs):
                    a(f"v_cvt_pk_bf16_f32 v{o+p}, v{r}, v{r+1}")
                for p, r in enumerate(rs):
                    a(f"v_lshlrev_b32 v{r}, 16, v{o+p}")
                    a(f"v_and_b32 v{r+1}, 0xffff0000, v{o+p}")
                for p, r in enumerate(rs):
                    a(f"v_pk_mul_f32 v[{t+2*p}:{t+2*p+1}], v[{r}:{r+1}], v[{r}:{r+1}]")
                for p, r in enumerate(rs):
                    a(f"v_pk_fma_f32 v[{t+2*p}:{t+2*p+1}], v[{t+2*p}:{t+2*p+1}], s[{S_T+2}:{S_T+3}], v[{U+4}:{U+5}]")
                for p, r in enumerate(rs):
                    a(f"v_pk_mul_f32 v[{t+2*p}:{t+2*p+1}], v[{t+2*p}:{t+2*p+1}], v[{r}:{r+1}]")
                for q in range(8):
                    a(f"v_exp_f32 v{t+q}, v{t+q}")
                for p, r in enumerate(rs):
                    a(f"v_pk_add_f32 v[{t+2*p}:{t+2*p+1}], v[{t+2*p}:{t+2*p+1}], 1.0 op_sel_hi:[1,0]")
                for q in range(8):
                    a(f"v_rcp_f32 v{t+q}, v{t+q}")
                for p, r in enumerate(rs):
                    a(f"v_pk_mul_f32 v[{t+2*p}:{t+2*p+1}], v[{t+2*p}:{t+2*p+1}], v[{r}:{r+1}]")
                for p, r in enumerate(rs):
                    a(f"v_cvt_pk_bf16_f32 v{o+p}, v{t+2*p}, v{t+2*p+1}")
    def zstore(j, sb):
        for hf in range(2):
            for i in range(2):
                o = PK + (j * 2 + i) * 8 + hf * 4
                a(f"buffer_store_dwordx4 v[{o}:{o+3}], v{U+7}, s[{R_WS}:{R_WS+3}], s{sb+hf} offen offset:{i*1024} sc1")
    gelu(1)
    a(f"""
    s_and_b32 s{S_T+1}, s{S_WAVE}, 1
    s_lshl_b32 s{S_T}, s{S_P1}, 18
    s_lshl_b32 s{S_T+4}, s{S_T+1}, 17
    s_add_u32 s{S_T}, s{S_T}, s{S_T+4}
    s_add_u32 s{S_T+4}, s{S_T}, {WS_Z1}
    s_add_u32 s{S_T+5}, s{S_T}, {WS_Z1 + PL}
    s_add_u32 s{S_T+6}, s{S_T}, {WS_Z2N}
    s_add_u32 s{S_T+7}, s{S_T}, {WS_Z2N + PL}
    """)
    for p in range(8):
        for i in range(2):
            o = PK + (2 + i) * 8 + p
            r = g.acc + (2 + i) * 16 + 2 * p
            S = t + 4 * i
            a(f"v_lshlrev_b32 v{r}, 16, v{o}")
            a(f"v_and_b32 v{r+1}, 0xffff0000, v{o}")
            if p == 0:
                a(f"v_mov_b32 v{S}, v{r}\nv_mul_f32 v{S+1}, v{r}, v{r}\nv_mov_b32 v{S+2}, v{r+1}\nv_mul_f32 v{S+3}, v{r+1}, v{r+1}")
            else:
                a(f"v_add_f32 v{S}, v{S}, v{r}\nv_fmac_f32 v{S+1}, v{r}, v{r}\nv_add_f32 v{S+2}, v{S+2}, v{r+1}\nv_fmac_f32 v{S+3}, v{r+1}, v{r+1}")
    a(f"""
    v_lshl_add_u32 v{U+8}, s{S_T+1}, 1, v{U+8}
    v_lshlrev_b32 v{U+8}, 10, v{U+8}
    v_lshl_add_u32 v{U+8}, v{U+6}, 3, v{U+8}
    v_add_u32 v{U+8}, {LDS_LNS}, v{U+8}
    v_pk_add_f32 v[{t}:{t+1}], v[{t}:{t+1}], v[{t+2}:{t+3}]
    v_pk_add_f32 v[{t+4}:{t+5}], v[{t+4}:{t+5}], v[{t+6}:{t+7}]
    ds_write_b64 v{U+8}, v[{t}:{t+1}]
    ds_write_b64 v{U+8}, v[{t+4}:{t+5}] offset:256
    v_lshlrev_b32 v{U+9}, 3, v{U+6}
    v_add_u32 v{U+9}, {LDS_LNQ}, v{U+9}
    s_waitcnt lgkmcnt(0)
    s_barrier
    """)
    stamp(a, 4)
    gelu(0)
    zstore(0, S_T + 4)
    a("s_barrier")
    stamp(a, 5)
    a(f"ds_read_b64 v[6:7], v{U+9}")
    a(f"ds_read_b64 v[8:9], v{U+9} offset:256")
    a("s_waitcnt lgkmcnt(0)")
    for hf in range(2):
        for i in range(2):
            M, R = 6 + 2 * i, 7 + 2 * i
            pr = [(g.acc + (2 + i) * 16 + 2 * p, PK + (2 + i) * 8 + p) for p in range(4 * hf, 4 * hf + 4)]
            interleave(a, [[f"v_sub_f32 v{r}, v{r}, v{M}",
                            f"v_sub_f32 v{r+1}, v{r+1}, v{M}",
                            f"v_cvt_pk_bf16_f32 v{o}, v{r}, v{r+1}",
                            f"v_lshlrev_b32 v{r}, 16, v{o}",
                            f"v_and_b32 v{r+1}, 0xffff0000, v{o}",
                            f"v_mul_f32 v{r}, v{r}, v{R}",
                            f"v_mul_f32 v{r+1}, v{r+1}, v{R}",
                            f"v_cvt_pk_bf16_f32 v{o}, v{r}, v{r+1}"] for r, o in pr])
            o = PK + (2 + i) * 8 + hf * 4
            a(f"buffer_store_dwordx4 v[{o}:{o+3}], v{U+7}, s[{R_WS}:{R_WS+3}], s{S_T+6+hf} offen offset:{i*1024} sc1")
    gs.c_setup()
    gs.zero_acc()
    srd(a, R_M, S_BSP, S_BSP + 1, 4096)
    Z1 = 96
    a(f"""
    v_lshlrev_b32 v{T}, 1, v{VR+1}
    buffer_load_ushort v{T+1}, v{T}, s[{R_M}:{R_M+3}], 0 offen
    s_and_b32 s{S_T+1}, s{S_WAVE}, 1
    s_lshl_b32 s{S_T+4}, s{S_P3}, 19
    s_lshl_b32 s{S_T+1}, s{S_T+1}, 18
    s_add_u32 s{S_T+4}, s{S_T+4}, s{S_T+1}
    s_add_u32 s{S_T+5}, s{S_T+4}, {WS_Z1}
    s_add_u32 s{S_T+4}, s{S_T+4}, {WS_H}
    v_lshrrev_b32 v{T+4}, 3, v{L}
    v_lshlrev_b32 v{T+4}, 16, v{T+4}
    v_and_b32 v{T+5}, 7, v{L}
    v_lshl_add_u32 v{T+4}, v{T+5}, 7, v{T+4}
    s_bfe_u32 s{S_T+6}, s{S_IDX}, 0x20003
    s_lshl_b32 s{S_T+7}, s{S_WAVE}, 2
    s_add_u32 s{S_T+6}, s{S_T+6}, s{S_T+7}
    s_lshl_b32 s{S_T+6}, s{S_T+6}, 10
    s_lshl_b32 s{S_T+7}, s{S_P3}, 19
    s_add_u32 s{S_T+6}, s{S_T+6}, s{S_T+7}
    s_add_u32 s{S_T+6}, s{S_T+6}, {WS_Z2N}
    s_waitcnt vmcnt(0)
    s_barrier
    """)
    stamp(a, 6)
    if PF2:
        pf_wout(a, T + 8)
    a("s_barrier")
    stamp(a, 7)
    if PF:
        for i in range(4):
            for o in OFS:
                a(f"buffer_load_dword v{VD}, v{T+4}, s[{R_WS}:{R_WS+3}], s{S_T+6} offen offset:{o}")
            a(f"s_add_u32 s{S_T+6}, s{S_T+6}, 16384")
    def z1load():
        for k in range(4):
            a(f"buffer_load_dwordx4 v[{Z1+4*k}:{Z1+4*k+3}], v{VR}, s[{R_WS}:{R_WS+3}], s{S_T+5} offen")
            a(f"s_add_u32 s{S_T+5}, s{S_T+5}, {PL}")
    a(f"s_setprio {os.environ.get('PSP', '0')}")
    gs.c_run(per=int(os.environ.get('PER2', '4')), after_first=z1load)
    a("s_setprio 2")
    stamp(a, 8)
    a("s_waitcnt vmcnt(0)")
    a(f"v_lshlrev_b32 v{T+2}, 16, v{T+1}")
    a(f"v_mov_b32 v{T+3}, v{T+2}")
    for k in range(4):
        ls = []
        for p in range(4):
            r = gs.acc + 8 * k + 2 * p
            z = Z1 + 4 * k + p
            F, G_ = T + 4 + p, T + 8 + 2 * p
            ls.append([f"v_cvt_pk_bf16_f32 v{F}, v{r}, v{r+1}",
                       f"v_lshlrev_b32 v{r}, 16, v{F}",
                       f"v_and_b32 v{r+1}, 0xffff0000, v{F}",
                       f"v_pk_add_f32 v[{r}:{r+1}], v[{r}:{r+1}], v[{T+2}:{T+3}]",
                       f"v_cvt_pk_bf16_f32 v{F}, v{r}, v{r+1}",
                       f"v_lshlrev_b32 v{r}, 16, v{F}",
                       f"v_and_b32 v{r+1}, 0xffff0000, v{F}",
                       f"v_lshlrev_b32 v{G_}, 16, v{z}",
                       f"v_and_b32 v{G_+1}, 0xffff0000, v{z}",
                       f"v_pk_mul_f32 v[{r}:{r+1}], v[{r}:{r+1}], v[{G_}:{G_+1}]",
                       f"v_cvt_pk_bf16_f32 v{z}, v{r}, v{r+1}"])
        interleave(a, ls)
        a(f"buffer_store_dwordx4 v[{Z1+4*k}:{Z1+4*k+3}], v{VR}, s[{R_WS}:{R_WS+3}], s{S_T+4} offen sc1")
        a(f"s_add_u32 s{S_T+4}, s{S_T+4}, {PL}")
    a("s_waitcnt vmcnt(0) lgkmcnt(0)")
    a("s_barrier")
    a("BC_H:")
    stamp(a, 9)
    gh.c_setup()
    gh.zero_acc()
    if FUSE:
        gf.zero_acc()
    X, BR = 96, 104
    srd(a, R_M, S_X, S_X + 1, 2048 * 1024)
    a(f"""
    s_and_b32 s{S_T+1}, s{S_WAVE}, 1
    s_lshl_b32 s{S_T+1}, s{S_T+1}, 6
    s_lshl_b32 s{S_T+4}, s{S_P3}, 7
    s_add_u32 s{S_T+4}, s{S_T+4}, s{S_T+1}
    buffer_load_dwordx4 v[{X}:{X+3}], v{VR+2}, s[{R_M}:{R_M+3}], s{S_T+4} offen
    buffer_load_dwordx4 v[{X+4}:{X+7}], v{VR+2}, s[{R_M}:{R_M+3}], s{S_T+4} offen offset:32
    v_lshrrev_b32 v{T}, 4, v{L}
    v_lshlrev_b32 v{T}, 16, v{T}
    v_and_b32 v{T+1}, 15, v{L}
    v_lshl_add_u32 v{T}, v{T+1}, 7, v{T}
    s_lshl_b32 s{S_T}, s{S_P3}, 2
    s_add_u32 s{S_T}, s{S_T}, s{S_WAVE}
    s_mul_i32 s{S_T+1}, s{S_T}, 205
    s_lshr_b32 s{S_T+1}, s{S_T+1}, 11
    s_mul_i32 s{S_T+1}, s{S_T+1}, 10
    s_sub_u32 s{S_T}, s{S_T}, s{S_T+1}
    s_lshl_b32 s{S_T}, s{S_T}, 18
    s_lshl_b32 s{S_T+1}, s{S_P2}, 11
    s_add_u32 s{S_T}, s{S_T}, s{S_T+1}
    s_add_u32 s{S_T}, s{S_T}, {WS_H + 16*PL}
    s_barrier
    """)
    if PF:
        for o in OFS:
            a(f"buffer_load_dword v{VD}, v{T}, s[{R_WS}:{R_WS+3}], s{S_T} offen offset:{o}")
    gh.c_run(per=6)
    stamp(a, 10)
    for p in range(8):
        a(f"v_cvt_pk_bf16_f32 v{BR+p}, v{gh.acc+2*p}, v{gh.acc+2*p+1}")
    srd(a, R_M, S_OUT, S_OUT + 1, 2048 * 1024)
    if not FUSE:
        a("s_waitcnt lgkmcnt(0)")
        gf.c_setup()
        gf.zero_acc()
        a("s_barrier")
        gf.c_run(per=6)
    stamp(a, 11)
    a("s_waitcnt vmcnt(0)")
    for hf in range(2):
        ls = []
        for p in range(4 * hf, 4 * hf + 4):
            r = gf.acc + 2 * p
            F, G_ = T + (p & 3), T + 4 + 2 * (p & 3)
            ls.append([f"v_cvt_pk_bf16_f32 v{F}, v{r}, v{r+1}",
                       f"v_lshlrev_b32 v{r}, 16, v{F}",
                       f"v_and_b32 v{r+1}, 0xffff0000, v{F}",
                       f"v_lshlrev_b32 v{G_}, 16, v{X+p}",
                       f"v_and_b32 v{G_+1}, 0xffff0000, v{X+p}",
                       f"v_pk_add_f32 v[{r}:{r+1}], v[{r}:{r+1}], v[{G_}:{G_+1}]",
                       f"v_cvt_pk_bf16_f32 v{F}, v{r}, v{r+1}",
                       f"v_lshlrev_b32 v{r}, 16, v{F}",
                       f"v_and_b32 v{r+1}, 0xffff0000, v{F}",
                       f"v_lshlrev_b32 v{G_}, 16, v{BR+p}",
                       f"v_and_b32 v{G_+1}, 0xffff0000, v{BR+p}",
                       f"v_pk_add_f32 v[{r}:{r+1}], v[{r}:{r+1}], v[{G_}:{G_+1}]",
                       f"v_cvt_pk_bf16_f32 v{X+p}, v{r}, v{r+1}"])
        interleave(a, ls)
        a(f"buffer_store_dwordx4 v[{X+4*hf}:{X+4*hf+3}], v{VR+2}, s[{R_M}:{R_M+3}], s{S_T+4} offen offset:{32*hf} {os.environ.get('OSC', '')}")
    if STAMP:
        a("s_waitcnt lgkmcnt(0)")
    stamp_flush(a, R_WS, S_WAVE, vbase=32)
    a("s_endpgm")


LIST = STAMP or os.environ.get('LIST', '0') == '1'
def gen():
    a = Asm()
    name = "mega_kernel" if LIST else "parallel_sum__softmax_full_mha__mixer_gmlp__prompt_kernel"
    a(kernel_header(name))
    a(f"""
    s_cmp_ge_u32 s2, 512
    s_cbranch_scc1 M_END
    """)
    if os.environ.get("ONLY") == "A":
        a("s_cmp_ge_u32 s2, 256\ns_cbranch_scc1 M_END")
    if os.environ.get("ONLY") == "B":
        a("s_sub_u32 s3, s2, 1\ns_cmp_lt_u32 s3, 255\ns_cbranch_scc1 M_END")
    if os.environ.get("SWAP") == "1":
        a("s_xor_b32 s2, s2, 256")
    stamp_init(a)
    stamp(a, 0)
    a(f"""
    s_load_dwordx8 s[4:11], s[0:1], 0
    s_load_dwordx8 s[12:19], s[0:1], 32
    s_load_dwordx4 s[20:23], s[0:1], 64
    s_load_dwordx2 s[24:25], s[0:1], 80
    v_and_b32 v{L}, 63, v0
    v_lshrrev_b32 v2, 6, v0
    v_readfirstlane_b32 s{S_WAVE}, v2
    s_and_b32 s{S_IDX}, s2, 255
    s_sub_u32 s{S_LW}, s{S_WAVE}, 4
    s_cmp_ge_u32 s2, 256
    s_cbranch_scc1 M_B
    """)
    a_params(a)
    a(f"""
    s_cmp_ge_u32 s{S_WAVE}, 4
    s_cbranch_scc0 M_AC
    """)
    a_loader(a)
    a("M_AC:")
    a_compute(a)
    a("M_B:")
    b_params(a)
    a(f"""
    s_cmp_ge_u32 s{S_WAVE}, 4
    s_cbranch_scc0 M_BC
    """)
    b_loader(a)
    a("M_BC:")
    b_compute(a)
    a("M_END:")
    a("s_endpgm")
    return name, a.render(), kernel_desc(name, 128, 128)

HEAD = open("parallel_sum__softmax_full_mha__mixer_gmlp__prompt.s.ref").read().split("; Override launch")[0]
if __name__ == "__main__":
    n, t, d = gen()
    out = HEAD + f"; @launch {'kernel=' + n + ' ' if LIST else ''}grid=(512,1,1) block=(512,1,1) lds=81920\n"
    out += '.amdgcn_target "amdgcn-amd-amdhsa--gfx950"\n.text\n' + t + '.section .rodata,"a"\n.p2align 6\n' + d
    path = sys.argv[1] if len(sys.argv) > 1 else "parallel_sum__softmax_full_mha__mixer_gmlp__prompt.s"
    open(path, "w").write(out)
    print("wrote", path, len(out))
```
